```python
import torch

def _softmax(x, axis=-1):
    return torch.softmax(x, dim=axis)
def _gelu(x):
    return torch.nn.functional.gelu(x, approximate="tanh")
def _silu(x):
    return torch.nn.functional.silu(x)
def _sigmoid(x):
    return torch.sigmoid(x)
def _layernorm(x, axis=-1, eps=1e-5):
    m = x.mean(dim=axis, keepdim=True)
    v = x.var(dim=axis, keepdim=True, unbiased=False)
    return (x - m) / torch.sqrt(v + eps)
def _scatter_add(tgt, idx, src, axis=0):
    return tgt.clone().index_add_(axis, idx, src)
def _segment_sum(src, seg, n):
    out = torch.zeros((n,) + src.shape[1:], dtype=src.dtype)
    return out.index_add_(0, seg, src)
def _pad(x, pw):
    flat = tuple(v for pair in reversed(pw) for v in pair)
    return torch.nn.functional.pad(x, flat)

kernel_name = 'standalone__self_sup_conv_stem_hubert__speech'

def setup_inputs():

    _w = (lambda a: (lambda t: t.to(torch.bfloat16) if t.is_floating_point() else t)(torch.as_tensor(a)))
    B, T, D, K = 2, 16000, 256, 31
    scale = (1.0 / (K * D)) ** 0.5
    return {
        "x": _w((lambda *s: torch.randn(*s, dtype=torch.bfloat16) * 0.05)(B, T, D)),
        "w": _w((lambda *s: torch.randn(*s, dtype=torch.bfloat16) * 0.05)(K, D, D) * scale),
        "b": _w((lambda *s: torch.randn(*s, dtype=torch.bfloat16) * 0.05)(D) * 0.1),
        "gamma": _w(torch.ones((D,), dtype=float)),
        "beta": _w(torch.zeros((D,), dtype=float)),
    }

def reference(x, w, b, gamma, beta):
    B, T, D = x.shape
    K = w.shape[0]
    s = 2
    L = (T - K) // s + 1
    y = torch.einsum('blc,cd->bld', x[:, 0 : s * L : s, :], w[0])
    for i in range(1, K):
        y = y + torch.einsum('blc,cd->bld', x[:, i : i + s * L : s, :], w[i])
    y = y + b[None, None, :]
    mu = y.mean(1, keepdims=True)
    var = ((y - mu) ** 2).mean(1, keepdims=True)
    yn = (y - mu) / torch.sqrt(var + 1e-5)
    yn = yn * gamma[None, None, :] + beta[None, None, :]
    return _gelu(yn)
```

```python
import sys
OPT = dict(a.split("=") if "=" in a else (a, "1") for a in sys.argv[1:])
STAMP = int(OPT.get("stamp", 0))
KN = "standalone__self_sup_conv_stem_hubert__speech_kernel"
o = []
def A(s):
    for l in s.split("\n"):
        l = l.strip()
        if l: o.append(l if l.endswith(":") or l.startswith((".", ";")) else "    " + l)

XS = [0, 17408]; OOFF = 8704; CL = 1088
SS = [34816, 43520]
STG = 52224
LDS = STG + 16384
WSTREAM = 393216
MISC = 8 << 20
FLAG_OFF = 0; STAT_OFF = 1 << 20; EPOCH_OFF = 2 << 20
ACC = {"a": 16, "b": 48, "c": 80}
def acc(p, j): r = ACC[p] + 4*j; return f"v[{r}:{r+3}]"
XSET = {"a": 0, "b": 60, "c": 120}
def xf(p, s): r = XSET[p] + 4*s; return f"a[{r}:{r+3}]"
def bf(p, q):
    if p == "c": r = 112 + 4*q; return f"v[{r}:{r+3}]"
    r = {"a": 180, "b": 212}[p] + 4*q; return f"a[{r}:{r+3}]"
vLane, vL16, vR0, vR1, vSO, vSE1, vT = "v1", "v2", "v3", "v4", "v5", "v6", "v7"
vX = ["v8", "v9", "v10", "v11", "v12"]
vG = 144
T0 = 152
sB, sN, sM, sW, sNu = "s36", "s37", "s38", "s39", "s40"
sNA, sNB, sE = "s41", "s42", "s43"
sWo, sXo, sCnt, sM0 = "s44", "s45", "s46", "s47"
sTmp = [f"s{i}" for i in range(48, 60)]
nstamp = [0]
def stamp():
    if STAMP:
        k = nstamp[0]; nstamp[0] += 1
        A(f"s_memrealtime s[{64+4*(k%8)}:{65+4*(k%8)}]\ns_memtime s[{66+4*(k%8)}:{67+4*(k%8)}]")
        stamp_flush(k)
def stamp_flush(k):
    A(f"s_waitcnt lgkmcnt(0)\nv_mov_b32 v{200+2*k}, s{64+4*(k%8)}\nv_mov_b32 v{201+2*k}, s{66+4*(k%8)}")

hdr = open("standalone__self_sup_conv_stem_hubert__speech.s.ref").read().split("; Override launch")[0]
for l in hdr.strip().split("\n"): o.append(l)
A(f"; @launch grid=(256,1,1) block=(256,1,1) lds={LDS}")
A(f'.amdgcn_target "amdgcn-amd-amdhsa--gfx950"\n.text\n.globl {KN}\n.p2align 8\n.type {KN},@function\n{KN}:')
A("s_cmp_ge_u32 s2, 256\ns_cbranch_scc1 L_end")
A("s_load_dwordx16 s[16:31], s[0:1], 0")
stamp()
A(f"""v_lshrrev_b32 v13, 6, v0
v_and_b32 {vLane}, 63, v0
s_and_b32 {sB}, s2, 1
v_readfirstlane_b32 {sW}, v13
s_bfe_u32 {sN}, s2, 0x20001
s_lshr_b32 {sM}, s2, 3
v_lshlrev_b32 {vL16}, 4, {vLane}
s_lshl_b32 {sNu}, {sN}, 2
s_add_u32 {sNu}, {sNu}, {sW}""")
A(f"""v_lshrrev_b32 v13, 1, {vLane}
v_and_b32 v14, 3, v13
v_bfe_u32 v15, v13, 2, 2
v_lshl_add_u32 v14, v15, 3, v14
v_lshrrev_b32 v15, 4, v13
v_lshl_add_u32 v14, v15, 2, v14
v_lshlrev_b32 v14, 9, v14
v_and_b32 v15, 1, {vLane}
v_lshl_add_u32 v14, v15, 4, v14
s_lshl_b32 s48, {sNu}, 5
v_add_u32 v14, s48, v14""")
A(f"""s_lshr_b32 s50, {sM}, 1
s_and_b32 s51, {sM}, 1
s_lshl_b32 s51, s51, 1
s_add_u32 s51, s51, {sB}
s_and_b32 s52, s50, 1
s_lshl_b32 s49, s51, 3
s_add_u32 s49, s49, s52
s_lshl_b32 s49, s49, 17
s_lshr_b32 s52, s50, 1
s_lshl_b32 s52, s52, 14
s_add_u32 s49, s49, s52
s_mul_i32 s53, s50, 24576
s_lshl_b32 s52, s51, 11
s_add_u32 s53, s53, s52
s_lshl_b32 s54, {sW}, 12
s_add_u32 s54, s54, {STG}
s_mov_b32 s10, 4063232
s_mov_b32 s11, 0x20000
s_mov_b32 s6, 16384000
s_mov_b32 s7, 0x20000
s_mov_b32 m0, s54
s_waitcnt lgkmcnt(0)
s_mov_b32 s8, s18
s_mov_b32 s9, s19
s_add_u32 s32, s30, {MISC}
s_addc_u32 s33, s31, 0
s_lshl_b32 s52, {sN}, 8
s_add_u32 s52, s52, {EPOCH_OFF}
s_load_dword {sE}, s[32:33], s52""")
for k in range(4):
    A(f"buffer_load_dwordx4 v14, s[8:11], s49 offen lds")
    if k < 3: A(f"s_add_u32 m0, m0, 1024\ns_add_u32 s49, s49, 262144")
A(f"""s_mov_b32 s4, s16
s_mov_b32 s5, s17
s_mul_i32 s55, {sM}, {255*2*512}
s_mul_i32 s56, {sB}, 8192000
s_add_u32 s55, s55, s56
s_lshl_b32 s56, {sW}, 4
s_movk_i32 s57, 241""")
def xaddr(dst, Rv, gv, sh):
    A(f"""v_cmp_le_u32 vcc, 136, {Rv}
v_subrev_u32 v15, 136, {Rv}
s_nop 0
v_cndmask_b32 {Rv}, {Rv}, v15, vcc
v_cndmask_b32 v150, 0, 2, vcc
v_mul_u32_u24 v15, s57, {Rv}
v_lshrrev_b32 v15, 12, v15
v_mul_u32_u24 v151, 17, v15
v_sub_u32 {Rv}, {Rv}, v151
v_lshl_add_u32 v15, {Rv}, 3, v15
v_lshl_add_u32 v15, v15, 2, v150
v_lshlrev_b32 v15, 9, v15
v_lshrrev_b32 {Rv}, 1, {Rv}
v_and_b32 {Rv}, 2, {Rv}
v_xor_b32 {Rv}, {Rv}, {gv}
v_lshl_add_u32 v15, {Rv}, 4, v15
v_add_u32 {dst}, s55, v15""")
A(f"v_lshrrev_b32 v152, 2, {vLane}\nv_add_u32 v152, s56, v152\nv_and_b32 v153, 3, {vLane}")
for k in range(4):
    A(f"v_add_u32 v13, {64*k}, v152")
    xaddr(vX[k], "v13", "v153", 0)
A(f"s_lshl_b32 s56, {sW}, 2\ns_add_u32 s56, s56, 256\nv_lshrrev_b32 v13, 4, {vLane}\nv_add_u32 v13, s56, v13\nv_bfe_u32 v153, {vLane}, 2, 2")
xaddr(vX[4], "v13", "v153", 0)
A(f"v_and_b32 v13, 3, {vLane}\nv_lshl_add_u32 {vX[4]}, v13, 2, {vX[4]}")
A(f"s_lshl_b32 {sM0}, {sW}, 10\ns_lshl_b32 s56, {sW}, 8\ns_add_u32 s56, s56, 16384")
A(f"s_mov_b32 s58, s56")
def xdma_list(slot, soff):
    L = []
    for k in range(4):
        L.append([f"s_add_u32 m0, {sM0}, {XS[slot] + 4096*k}", f"buffer_load_dwordx4 {vX[k]}, s[4:7], {soff} offen lds"])
    L.append([f"s_add_u32 m0, s58, {XS[slot]}", f"buffer_load_dword {vX[4]}, s[4:7], {soff} offen lds"])
    return L
A(f"s_mov_b32 {sXo}, 0\ns_movk_i32 s59, 512")
for slot, so in ((0, sXo), (1, "s59")):
    for m0, ld in xdma_list(slot, so): A(m0 + "\ns_nop 0\n" + ld)
A(f"""v_lshrrev_b32 v13, 4, {vLane}
v_lshlrev_b32 v13, 3, v13
v_add_u32 v13, s48, v13
global_load_dwordx2 v[{vG}:{vG+1}], v13, s[22:23]
global_load_dwordx2 v[{vG+2}:{vG+3}], v13, s[24:25]
global_load_dwordx2 v[{vG+4}:{vG+5}], v13, s[20:21]""")
A(f"""v_and_b32 v13, 15, {vLane}
v_lshrrev_b32 v15, 4, {vLane}
v_lshrrev_b32 v150, 1, v13
v_and_b32 v150, 2, v150
v_xor_b32 v150, v150, v15
v_lshlrev_b32 v150, 4, v150
v_lshl_add_u32 {vR0}, v13, 6, v150
v_add_u32 v13, 1, v13
v_lshrrev_b32 v150, 1, v13
v_and_b32 v150, 2, v150
v_xor_b32 v150, v150, v15
v_lshlrev_b32 v150, 4, v150
v_lshl_add_u32 {vR1}, v13, 6, v150
s_mul_i32 s52, {sW}, {2*CL}
v_add_u32 {vSO}, s52, {vL16}
v_add_u32 {vSE1}, {2*CL}, {vSO}
v_lshrrev_b32 v13, 2, {vLane}
v_add_u32 v15, 1, v13
v_xor_b32 v13, v13, v15
v_lshrrev_b32 v13, 1, v13
v_and_b32 v13, 2, v13
v_and_b32 v150, 3, {vLane}
v_xor_b32 v13, v13, v150
v_lshlrev_b32 v13, 4, v13
v_lshl_add_u32 v13, v15, 6, v13
s_cmp_eq_u32 {sW}, 3
s_cselect_b64 vcc, -1, 0
v_cndmask_b32 {vSE1}, {vSE1}, v13, vcc
v_bfe_u32 v13, {vLane}, 4, 1
v_mul_u32_u24 v13, {CL}, v13
v_and_b32 v15, 15, {vLane}
v_lshl_add_u32 v13, v15, 2, v13
s_add_u32 s52, s52, 1024
v_add_u32 {vT}, s52, v13
v_lshl_add_u32 v14, {vLane}, 3, s54""")
A(f"""s_mul_i32 s52, {sNu}, {WSTREAM}
s_add_u32 s12, s30, s52
s_addc_u32 s13, s31, 0
s_mov_b32 s14, {WSTREAM}
s_mov_b32 s15, 0x20000
s_mov_b32 s34, {4<<20}
s_mov_b32 s35, 0x20000""")
for r in range(16, 112): A(f"v_mov_b32 v{r}, 0")
A("s_waitcnt vmcnt(13)")
stamp()
for k in range(4):
    A(f"ds_read_b64_tr_b16 v[{T0+4*k}:{T0+4*k+1}], v14 offset:{1024*k}\nds_read_b64_tr_b16 v[{T0+4*k+2}:{T0+4*k+3}], v14 offset:{1024*k+512}")
def addpair(d, x, y, t):
    return [f"v_lshlrev_b32 v{t}, 16, v{x}", f"v_lshlrev_b32 v{t+1}, 16, v{y}", f"v_and_b32 v{t+2}, 0xffff0000, v{x}",
            f"v_and_b32 v{t+3}, 0xffff0000, v{y}", f"v_add_f32 v{t}, v{t}, v{t+1}", f"v_add_f32 v{t+2}, v{t+2}, v{t+3}",
            f"v_cvt_pk_bf16_f32 v{d}, v{t}, v{t+2}"]
A(f"s_add_u32 s50, s53, 8192\ns_add_u32 s51, s53, 16384\ns_waitcnt lgkmcnt(0)")
A(f"s_add_u32 {sNA}, {sE}, 1\ns_mul_i32 {sNB}, {sE}, 0x9E3779B1\ns_add_u32 {sNB}, {sNB}, 0x7F4A7C15")
A(f"""buffer_store_dwordx4 v[{T0}:{T0+3}], {vL16}, s[12:15], s53 offen sc1
buffer_store_dwordx4 v[{T0+8}:{T0+11}], {vL16}, s[12:15], s53 offen offset:1024 sc1
buffer_store_dwordx4 v[{T0+4}:{T0+7}], {vL16}, s[12:15], s50 offen sc1
buffer_store_dwordx4 v[{T0+12}:{T0+15}], {vL16}, s[12:15], s50 offen offset:1024 sc1""")
for h in range(2):
    for d in range(4):
        for x in addpair(T0+16+4*h+d, T0+8*h+d, T0+8*h+4+d, T0+24): A(x)
    A(f"buffer_store_dwordx4 v[{T0+16+4*h}:{T0+19+4*h}], {vL16}, s[12:15], s51 offen offset:{1024*h} sc1")
A("s_waitcnt vmcnt(0)\ns_barrier")
stamp()
A(f"""s_lshl_b32 s52, {sM}, 1
s_add_u32 s52, s52, {sB}
s_lshl_b32 s52, s52, 3
s_lshl_b32 s53, {sN}, 9
s_add_u32 s52, s52, s53
v_mov_b32 v{T0}, {sNA}
v_mov_b32 v{T0+1}, {sNB}
v_mov_b32 v13, s52
v_cmp_eq_u32 vcc, 0, v0
s_and_saveexec_b64 s[50:51], vcc
buffer_store_dwordx2 v[{T0}:{T0+1}], v13, s[32:35], 0 offen offset:{FLAG_OFF} sc1
s_mov_b64 exec, s[50:51]
v_lshl_add_u32 v13, {vLane}, 3, s53""")
SA, SBr, SD, ST = 160, 164, 168, 172
RA, RB, RD, RT = 176, 177, 178, 180
def s_piece(e, xs, ss):
    rd = [f"ds_read_b128 v[{SA}:{SA+3}], {vSO} offset:{XS[xs] + OOFF + e*CL}",
          f"ds_read_b128 v[{SBr}:{SBr+3}], {vSO if e == 0 else vSE1} offset:{XS[xs] + (CL if e == 0 else 0)}"]
    va = []
    for d in range(4): va += addpair(SD+d, SA+d, SBr+d, ST)
    wr = [f"ds_write_b128 {vSO}, v[{SD}:{SD+3}] offset:{SS[ss] + e*CL}"]
    return rd, va, wr
def r_piece(xs, ss):
    rd = [f"ds_read_b32 v{RA}, {vT} offset:{XS[xs] + OOFF}", f"ds_read_b32 v{RB}, {vT} offset:{XS[xs] + CL}"]
    return rd, addpair(RD, RA, RB, RT), [f"ds_write_b32 {vT}, v{RD} offset:{SS[ss]}"]
def frag_reads(p, base):
    return [f"ds_read_b128 {xf(p, s)}, {vR0 if s < 8 else vR1} offset:{base + (s & 7)*CL}" for s in range(15)]
rd, va, wr = s_piece(0, 0, 0); rd2, va2, wr2 = r_piece(0, 0)
for x in rd + rd2: A(x)
fr = frag_reads("a", XS[0])
for x in fr[:8]: A(x)
A("s_waitcnt lgkmcnt(8)")
for x in va + wr + va2 + wr2: A(x)
for x in fr[8:]: A(x)
A(f"s_mov_b32 {sCnt}, 30000\nL_poll1:")
A(f"""buffer_load_dwordx2 v[{T0}:{T0+1}], v13, s[32:35], 0 offen offset:{FLAG_OFF} sc1
s_sub_u32 {sCnt}, {sCnt}, 1
s_cbranch_scc1 L_poll1_done
s_waitcnt vmcnt(0)
v_cmp_eq_u32 vcc, {sNA}, v{T0}
v_cmp_eq_u32 s[50:51], {sNB}, v{T0+1}
s_and_b64 vcc, vcc, s[50:51]
s_cmp_eq_u64 vcc, -1
s_cbranch_scc0 L_poll1
L_poll1_done:""")
stamp()
def bloads(p, nq):
    L = []
    for q in range(nq):
        L.append(f"buffer_load_dwordx4 {bf(p, q)}, {vL16}, s[12:15], {sWo} offen offset:{1024*(q & 3)} sc1")
    return L
A(f"s_mov_b32 {sWo}, 0")
for p in "ab":
    L = bloads(p, 8)
    for q in range(8):
        A(L[q])
        if q & 3 == 3: A(f"s_add_u32 {sWo}, {sWo}, 4096")
A(f"s_mov_b32 {sCnt}, 8\ns_movk_i32 {sXo}, 64\ns_waitcnt vmcnt(8)")
stamp()

def product(p, par, fill, nq):
    i = 0
    for q2 in range(4):
        for j in range(8):
            for q in (2*q2, 2*q2+1):
                if q >= nq: continue
                A(f"v_mfma_f32_16x16x32_bf16 {acc(p, j)}, {bf(p, q)}, {xf(p, j+q)}, {acc(p, j)}")
                for x in fill[i]: A(x)
                i += 1
    assert all(not f for f in fill[i:]), (p, par)
def place(fill, items, slots):
    assert len(items) <= len(slots), (len(items), len(slots))
    for it, s in zip(items, slots): fill[s] += it if isinstance(it, list) else [it]
RSL = [2, 5, 9, 12, 15, 18, 22, 25, 28, 31, 35, 38, 41, 44, 48]
def lgk_after(fill, upto, marker):
    seq = [x for s in range(upto) for x in fill[s]]
    k = seq.index(marker)
    return sum(1 for x in seq[k+1:] if x.startswith("ds_"))
def add_piece(fill, piece, rdslots, vstart, nslots):
    rd, va, wr = piece
    place(fill, rd, rdslots)
    n = lgk_after(fill, vstart, rd[-1])
    fill[vstart].insert(0, f"s_waitcnt lgkmcnt({n})")
    s = vstart
    for x in va + wr:
        while len(fill[s]) >= (2 if s != vstart else 2) or (len(fill[s]) == 1 and s < nslots - 30 and False): s += 1
        fill[s].append(x); s += 1
    return s
def bplace(fill, p, nq, slots):
    L = bloads(p, nq)
    for q in range(nq):
        fill[slots[q]].append(L[q])
    fill[slots[3] + 1].append(f"s_add_u32 {sWo}, {sWo}, 4096")
    fill[slots[nq-1] + 1].append(f"s_add_u32 {sWo}, {sWo}, 4096")
BSL = [0, 4, 8, 13, 17, 21, 26, 30]
A("L_loop:")
for par in range(2):
    t = par
    nb = 8 if par == 0 else 7
    nb_next = 7 if par == 0 else 8
    fill = [[] for _ in range(64)]
    place(fill, frag_reads("b", XS[t] + OOFF), RSL)
    bplace(fill, "c", 8, BSL)
    e = add_piece(fill, s_piece(1, t, t), [0, 1], 10, 64)
    A(f"s_waitcnt vmcnt({5 + nb}) lgkmcnt(0)")
    product("a", par, fill, 8)
    fill = [[] for _ in range(64)]
    place(fill, frag_reads("c", SS[t]), RSL)
    bplace(fill, "a", 8, BSL)
    xl = xdma_list(t, sXo)
    for (m0, ld), s in zip(xl, [33, 37, 40, 43, 46]):
        fill[s].append(m0); fill[s+1].append(ld)
    fill[49].append(f"s_add_u32 {sXo}, {sXo}, 512" if par == 0 else f"s_sub_u32 {sXo}, {sXo}, 448")
    if par == 0:
        fill[3].append(f"s_cmp_eq_u32 {sCnt}, 1"); fill[6].append("s_cselect_b32 s6, 0, s6")
    add_piece(fill, r_piece(1-t, 1-t), [0, 1], 10, 64)
    A("s_waitcnt vmcnt(8) lgkmcnt(0)\ns_barrier")
    product("b", par, fill, nb)
    fill = [[] for _ in range(64)]
    place(fill, frag_reads("a", XS[1-t]), RSL)
    bplace(fill, "b", nb_next, BSL)
    add_piece(fill, s_piece(0, 1-t, 1-t), [0, 1], 10, 64)
    if par == 1:
        fill[58].append(f"s_sub_u32 {sCnt}, {sCnt}, 1"); fill[60].append(f"s_cmp_lg_u32 {sCnt}, 0")
    A("s_waitcnt vmcnt(13) lgkmcnt(0)")
    product("c", par, fill, 8)
A("s_cbranch_scc1 L_loop")
stamp()
a_, b_, c_ = ACC["a"], ACC["b"], ACC["c"]
def pr(r): return f"v[{r}:{r+1}]"
for i in range(4): A(f"v_mov_b32_dpp v{T0+i}, v{a_+i} row_shl:1 row_mask:0xf bank_mask:0xf bound_ctrl:0")
A(f"""v_and_b32 v13, 15, {vLane}
s_cmp_eq_u32 {sM}, 31
s_cselect_b32 s50, 5, 16
s_cselect_b32 s51, 5, 15
v_cmp_gt_u32 s[52:53], s50, v13
v_cmp_gt_u32 s[54:55], s51, v13
s_nop 3""")
for j in range(8):
    for h in range(2):
        A(f"v_pk_add_f32 {pr(c_+4*j+2*h)}, {pr(c_+4*j+2*h)}, {pr(b_+4*j+2*h)} neg_lo:[0,1] neg_hi:[0,1]")
    for h in range(2):
        A(f"v_pk_add_f32 {pr(b_+4*j+2*h)}, {pr(b_+4*j+2*h)}, {pr(a_+4*j+2*h)}")
    for h in range(2):
        nx = a_+4*(j+1)+2*h if j < 7 else T0+2*h
        A(f"v_pk_add_f32 {pr(c_+4*j+2*h)}, {pr(c_+4*j+2*h)}, {pr(nx)} neg_lo:[0,1] neg_hi:[0,1]")
for i in range(4): A(f"v_cndmask_b32 v{T0+4+i}, 0, v{c_+28+i}, s[54:55]")
SUM, SQ = 112, 116
vals = [b_+4*j for j in range(8)] + [c_+4*j for j in range(7)] + [T0+4]
for k, r in enumerate(vals):
    for h in range(2):
        if k == 1: A(f"v_pk_add_f32 {pr(SUM+2*h)}, {pr(vals[0]+2*h)}, {pr(r+2*h)}")
        elif k > 1: A(f"v_pk_add_f32 {pr(SUM+2*h)}, {pr(SUM+2*h)}, {pr(r+2*h)}")
        if k == 0: A(f"v_pk_mul_f32 {pr(SQ+2*h)}, {pr(r+2*h)}, {pr(r+2*h)}")
        else: A(f"v_pk_fma_f32 {pr(SQ+2*h)}, {pr(r+2*h)}, {pr(r+2*h)}, {pr(SQ+2*h)}")
for i in range(8): A(f"v_cndmask_b32 v{SUM+i}, 0, v{SUM+i}, s[52:53]")
def rowreduce(base):
    for sh in (8, 4, 2, 1):
        for i in range(8): A(f"v_add_f32_dpp v{base+i}, v{base+i}, v{base+i} row_ror:{sh} row_mask:0xf bank_mask:0xf")
rowreduce(SUM)
A(f"""v_cmp_eq_u32 vcc, 1, v13
v_cmp_eq_u32 s[50:51], 2, v13
v_cmp_eq_u32 s[56:57], 3, v13
v_cmp_gt_u32 s[58:59], 4, v13
v_cndmask_b32 v120, v{SUM}, v{SUM+1}, vcc
v_cndmask_b32 v122, v{SQ}, v{SQ+1}, vcc
v_cndmask_b32 v120, v120, v{SUM+2}, s[50:51]
v_cndmask_b32 v122, v122, v{SQ+2}, s[50:51]
v_cndmask_b32 v120, v120, v{SUM+3}, s[56:57]
v_cndmask_b32 v122, v122, v{SQ+3}, s[56:57]
v_mov_b32 v121, {sNA}
v_mov_b32 v123, {sNB}
s_lshl_b32 s50, {sB}, 4
s_add_u32 s50, s50, {sNu}
s_lshl_b32 s50, s50, 13
s_add_u32 s50, s50, {STAT_OFF}
s_lshl_b32 s51, {sM}, 4
s_add_u32 s51, s51, s50
v_lshrrev_b32 v14, 4, {vLane}
v_lshlrev_b32 v14, 11, v14
v_lshl_add_u32 v15, v13, 9, v14
v_lshl_add_u32 v14, v13, 4, v14
s_mov_b64 exec, s[58:59]
buffer_store_dwordx4 v[120:123], v15, s[32:35], s51 offen sc1
s_mov_b64 exec, -1""")
stamp()
for k in range(3):
    for h in range(2):
        A(f"v_lshlrev_b32 v{124+4*k+2*h}, 16, v{vG+2*k+h}\nv_and_b32 v{125+4*k+2*h}, 0xffff0000, v{vG+2*k+h}")
A(f"""s_mul_i32 s51, {sB}, {7985*512}
s_add_u32 s8, s26, s51
s_addc_u32 s9, s27, 0
s_mov_b32 s10, {7985*512}
s_mul_i32 s51, {sM}, {255*512}
s_lshl_b32 s56, {sNu}, 5
s_add_u32 s51, s51, s56
v_lshrrev_b32 v15, 4, {vLane}
v_lshlrev_b32 v15, 3, v15
v_lshl_add_u32 v15, v13, 13, v15
v_add_u32 v15, s51, v15
v_add_u32 v136, 4096, v15
v_mov_b32 v137, 0x40000000
v_cndmask_b32 v137, v137, v136, s[54:55]
s_mov_b32 {sCnt}, 30000
L_poll2:""")
P = 152
for k in range(8):
    A(f"buffer_load_dwordx4 v[{P+4*k}:{P+4*k+3}], v14, s[32:35], s50 offen offset:{(k & 3)*512 + (k >> 2)*256} sc1")
A(f"s_sub_u32 {sCnt}, {sCnt}, 1\ns_cbranch_scc1 L_poll2_done")
for k in range(8):
    A(f"s_waitcnt vmcnt({7-k})")
    A(f"v_xor_b32 v{P+4*k+1}, {sNA}, v{P+4*k+1}\nv_xor_b32 v{P+4*k+3}, {sNB}, v{P+4*k+3}")
    if k == 0: A(f"v_or_b32 v138, v{P+1}, v{P+3}")
    else: A(f"v_or3_b32 v138, v138, v{P+4*k+1}, v{P+4*k+3}")
A("""v_cmp_ne_u32 vcc, 0, v138
s_cbranch_vccnz L_poll2
L_poll2_done:""")
stamp()
for i in range(4):
    A(f"v_add_f32 v{SUM+i}, v{P+4*i}, v{P+16+4*i}\nv_add_f32 v{SQ+i}, v{P+4*i+2}, v{P+16+4*i+2}")
A(f"""s_lshl_b32 s50, {sN}, 1
s_cmp_eq_u32 s2, s50
s_cbranch_scc0 L_noep
v_mov_b32 v138, {sNA}
s_lshl_b32 s50, {sN}, 8
s_add_u32 s50, s50, {EPOCH_OFF}
v_mov_b32 v139, s50
v_cmp_eq_u32 vcc, 0, v0
s_and_saveexec_b64 s[50:51], vcc
buffer_store_dword v138, v139, s[32:35], 0 offen sc1
s_mov_b64 exec, s[50:51]
L_noep:""")
rowreduce(SUM)
A(f"s_mov_b32 s50, {hex(0x39035126)}")
import struct
def f2h(x): return hex(struct.unpack("<I", struct.pack("<f", x))[0])
o[-1] = f"    s_mov_b32 s50, {f2h(1.0/7985)}"
A(f"s_mov_b32 s51, {f2h(1e-5)}")
for i in range(4): A(f"v_mul_f32 v{SUM+i}, s50, v{SUM+i}")
for i in range(4): A(f"v_mul_f32 v{SQ+i}, s50, v{SQ+i}")
for i in range(4): A(f"v_fma_f32 v{SQ+i}, -v{SUM+i}, v{SUM+i}, v{SQ+i}")
for i in range(4): A(f"v_max_f32 v{SQ+i}, 0, v{SQ+i}")
for i in range(4): A(f"v_add_f32 v{SQ+i}, s51, v{SQ+i}")
for i in range(4): A(f"v_rsq_f32 v{SQ+i}, v{SQ+i}")
for i in range(4): A(f"v_add_f32 v{SUM+i}, v{SUM+i}, v{132+i}")
for i in range(4): A(f"v_mul_f32 v{SQ+i}, v{SQ+i}, v{124+i}")
for i in range(4): A(f"v_sub_f32 v{SUM+i}, v{132+i}, v{SUM+i}")
for i in range(4): A(f"v_fma_f32 v{SUM+i}, v{SUM+i}, v{SQ+i}, v{128+i}")
A(f"""v_mov_b32 v140, {f2h(-2.302208198)}
v_mov_b32 v141, {f2h(-2.302208198)}
v_mov_b32 v142, {f2h(-0.1029432397)}
v_mov_b32 v143, {f2h(-0.1029432397)}""")
for j in range(8):
    regs = [b_+4*j, b_+4*j+2, c_+4*j, c_+4*j+2]
    tp = [152 + 2*k for k in range(4)]
    for k, r in enumerate(regs): A(f"v_pk_fma_f32 {pr(r)}, {pr(r)}, {pr(SQ+2*(k&1))}, {pr(SUM+2*(k&1))}")
    for r, t in zip(regs, tp): A(f"v_pk_mul_f32 {pr(t)}, {pr(r)}, {pr(r)}")
    for r, t in zip(regs, tp): A(f"v_pk_fma_f32 {pr(t)}, {pr(t)}, v[142:143], v[140:141]")
    for r, t in zip(regs, tp): A(f"v_pk_mul_f32 {pr(t)}, {pr(t)}, {pr(r)}")
    for t in tp: A(f"v_exp_f32 v{t}, v{t}\nv_exp_f32 v{t+1}, v{t+1}")
    for t in tp: A(f"v_pk_add_f32 {pr(t)}, {pr(t)}, 1.0 op_sel_hi:[1,0]")
    for t in tp: A(f"v_rcp_f32 v{t}, v{t}\nv_rcp_f32 v{t+1}, v{t+1}")
    for r, t in zip(regs, tp): A(f"v_pk_mul_f32 {pr(t)}, {pr(t)}, {pr(r)}")
    d = 160 + 4*(j & 1)
    for k, t in enumerate(tp): A(f"v_cvt_pk_bf16_f32 v{d+k}, v{t}, v{t+1}")
    for par in range(2):
        row = 2*j + par
        va = "v15" if row < 8 else ("v136" if row < 15 else "v137")
        A(f"buffer_store_dwordx2 v[{d+2*par}:{d+2*par+1}], {va}, s[8:11], 0 offen offset:{(row & 7)*512}")
if STAMP:
    stamp()
    A("s_waitcnt vmcnt(0)")
    stamp()
    A(f"s_add_u32 s8, s30, {200<<20}\ns_addc_u32 s9, s31, 0\ns_mov_b32 s10, 65536\ns_lshl_b32 s50, s2, 7\nv_mov_b32 v13, s50\nv_cmp_eq_u32 vcc, 0, v0\ns_and_saveexec_b64 s[50:51], vcc")
    for k in range(nstamp[0]): A(f"buffer_store_dwordx2 v[{200+2*k}:{201+2*k}], v13, s[8:11], 0 offen offset:{8*k}")
A("L_end:\ns_endpgm")
A(f""".section .rodata,"a"
.p2align 6
.amdhsa_kernel {KN}
.amdhsa_next_free_vgpr 512
.amdhsa_next_free_sgpr 102
.amdhsa_accum_offset 256
.amdhsa_group_segment_fixed_size 0
.amdhsa_kernarg_size 64
.amdhsa_user_sgpr_count 2
.amdhsa_user_sgpr_kernarg_segment_ptr 1
.amdhsa_system_sgpr_workgroup_id_x 1
.end_amdhsa_kernel""")
print("\n".join(o))
```

```python
import sys
OPT = dict(a.split("=") if "=" in a else (a, "1") for a in sys.argv[1:])
STAMP = int(OPT.get("stamp", 0))
PROF = int(OPT.get("prof", 0))
KN = "standalone__self_sup_conv_stem_hubert__speech_kernel"
o = []
def A(s):
    for l in s.split("\n"):
        l = l.strip()
        if l: o.append(l if l.endswith(":") or l.startswith((".", ";")) else "    " + l)

XS = [0, 17408]; OOFF = 8704; CL = 1088
SS = [34816, 43520]
STG = 65536
RB0 = 100352
R15 = 52224
PAIR = 65536
ROT = int(OPT.get('rot', 0))
LDS = RB0 + 4*15360
WSTREAM = 393216
MISC = 8 << 20
FLAG_OFF = 0; STAT_OFF = 1 << 20; EPOCH_OFF = 2 << 20
ACC = {"a": 16, "b": 48, "c": 80}
def acc(p, j): r = ACC[p] + 4*j; return f"v[{r}:{r+3}]"
XSET = {"a": 0, "b": 60, "c": 120}
def xf(p, s): r = XSET[p] + 4*s; return f"a[{r}:{r+3}]"
def bf(p, q):
    if p == "c": r = 112 + 4*q; return f"v[{r}:{r+3}]"
    r = {"a": 180, "b": 212}[p] + 4*q; return f"a[{r}:{r+3}]"
vLane, vL16, vR0, vR1, vSO, vSE1, vT = "v1", "v2", "v3", "v4", "v5", "v6", "v7"
vX = ["v8", "v9", "v10", "v11", "v12"]
vR0x, vR1x, vSOx, vTx = "v184", "v185", "v186", "v187"
sXo1 = "s60"
vG = 144
T0 = 152
sB, sN, sM, sW, sNu = "s36", "s37", "s38", "s39", "s40"
sNA, sNB, sE = "s41", "s42", "s43"
sWo, sXo, sCnt, sM0 = "s44", "s45", "s46", "s47"
sTmp = [f"s{i}" for i in range(48, 60)]
nstamp = [0]
def stamp():
    if STAMP:
        k = nstamp[0]; nstamp[0] += 1
        A(f"s_memrealtime s[70:71]\ns_memtime s[72:73]\ns_waitcnt lgkmcnt(0)\ns_mov_b32 s{74+2*k}, s70\ns_mov_b32 s{75+2*k}, s72")
RA_, RB_ = 188, 220
vWr, vTr0, vTr15 = "v252", "v253", "v254"
sRB, sR15 = "s62", "s63"
def sT(q): return "0" if q == 0 else ["s64", "s65", "s66", "s67", "s68", "s69", "s61"][q-1]
MAP = int(OPT.get("map", 1))
if MAP == 0: MAPC = f"s_bfe_u32 {sN}, s2, 0x20001\ns_lshr_b32 {sM}, s2, 3"
elif MAP == 1: MAPC = f"s_bfe_u32 {sN}, s2, 0x20003\ns_bfe_u32 {sM}, s2, 0x20001\ns_lshr_b32 s48, s2, 5\ns_lshl_b32 {sM}, {sM}, 3\ns_add_u32 {sM}, {sM}, s48"
else: MAPC = f"s_bfe_u32 {sN}, s2, 0x10001\ns_bfe_u32 s48, s2, 0x10003\ns_lshl_b32 {sN}, {sN}, 1\ns_add_u32 {sN}, {sN}, s48\ns_bfe_u32 {sM}, s2, 0x10002\ns_lshl_b32 {sM}, {sM}, 4\ns_lshr_b32 s48, s2, 4\ns_add_u32 {sM}, {sM}, s48"
hdr = open("standalone__self_sup_conv_stem_hubert__speech.s.ref").read().split("; Override launch")[0]
for l in hdr.strip().split("\n"): o.append(l)
A(f"; @launch grid=(256,1,1) block=(256,1,1) lds={LDS}")
A(f'.amdgcn_target "amdgcn-amd-amdhsa--gfx950"\n.text\n.globl {KN}\n.p2align 8\n.type {KN},@function\n{KN}:')
A("s_cmp_ge_u32 s2, 256\ns_cbranch_scc1 L_end")
A("s_load_dwordx16 s[16:31], s[0:1], 0")
if OPT.get("pst"): A("s_memrealtime s[74:75]\ns_memtime s[72:73]"); nstamp[0] += 1
else: stamp()
A(f"""v_lshrrev_b32 v13, 6, v0
v_and_b32 {vLane}, 63, v0
s_and_b32 {sB}, s2, 1
v_readfirstlane_b32 {sW}, v13
{MAPC}
v_lshlrev_b32 {vL16}, 4, {vLane}
s_lshl_b32 {sNu}, {sN}, 2
s_add_u32 {sNu}, {sNu}, {sW}""")
A(f"""v_lshrrev_b32 v13, 3, v0
v_bfe_u32 v14, v0, 4, 1
v_bfe_u32 v15, v0, 6, 1
v_lshl_add_u32 v14, v15, 1, v14
v_bfe_u32 v15, v0, 1, 2
v_xor_b32 v14, v14, v15
v_lshlrev_b32 v14, 5, v14
v_lshl_add_u32 v14, v13, 9, v14
v_and_b32 v15, 1, v0
v_lshl_add_u32 v14, v15, 4, v14
s_lshl_b32 s48, {sN}, 7
v_add_u32 v14, s48, v14
s_lshl_b32 s48, {sNu}, 5""")
A(f"""s_lshr_b32 s50, {sM}, 1
s_and_b32 s51, {sM}, 1
s_lshl_b32 s51, s51, 1
s_add_u32 s51, s51, {sB}
s_and_b32 s52, s50, 1
s_lshl_b32 s49, s51, 3
s_add_u32 s49, s49, s52
s_lshl_b32 s49, s49, 17
s_lshr_b32 s52, s50, 1
s_lshl_b32 s52, s52, 14
s_add_u32 s49, s49, s52
s_mul_i32 s53, s50, 24576
s_lshl_b32 s52, s51, 11
s_add_u32 s53, s53, s52
s_lshl_b32 {sM0}, {sW}, 10
s_mov_b32 s10, 4063232
s_mov_b32 s11, 0x20000
s_mov_b32 s6, 16384000
s_mov_b32 s7, 0x20000
s_mul_i32 s55, {sM}, {255*2*512}
s_mul_i32 s56, {sB}, 8192000
s_add_u32 s55, s55, s56
s_lshl_b32 s56, {sW}, 4
s_movk_i32 s57, 241""")
def xaddr(dst, Rv, gv, sh):
    A(f"""v_cmp_le_u32 vcc, 136, {Rv}
v_subrev_u32 v15, 136, {Rv}
s_nop 0
v_cndmask_b32 {Rv}, {Rv}, v15, vcc
v_cndmask_b32 v150, 0, 2, vcc
v_mul_u32_u24 v15, s57, {Rv}
v_lshrrev_b32 v15, 12, v15
v_mul_u32_u24 v151, 17, v15
v_sub_u32 {Rv}, {Rv}, v151
v_lshl_add_u32 v15, {Rv}, 3, v15
v_lshl_add_u32 v15, v15, 2, v150
v_lshlrev_b32 v15, 9, v15
v_lshrrev_b32 {Rv}, 1, {Rv}
v_and_b32 {Rv}, 2, {Rv}
v_xor_b32 {Rv}, {Rv}, {gv}
v_lshl_add_u32 v15, {Rv}, 4, v15
v_add_u32 {dst}, s55, v15""")
A(f"v_lshrrev_b32 v152, 2, {vLane}\nv_add_u32 v152, s56, v152\nv_and_b32 v153, 3, {vLane}")
for k in range(4):
    A(f"v_add_u32 v13, {64*k}, v152")
    xaddr(vX[k], "v13", "v153", 0)
A(f"s_lshl_b32 s56, {sW}, 2\ns_add_u32 s56, s56, 256\nv_lshrrev_b32 v13, 4, {vLane}\nv_add_u32 v13, s56, v13\nv_bfe_u32 v153, {vLane}, 2, 2")
xaddr(vX[4], "v13", "v153", 0)
A(f"v_and_b32 v13, 3, {vLane}\nv_lshl_add_u32 {vX[4]}, v13, 2, {vX[4]}")
A(f"s_lshl_b32 s58, {sW}, 8\ns_add_u32 s58, s58, 16384\ns_mov_b32 {sXo}, 0\ns_movk_i32 {sXo1}, 512")
A(f"s_add_u32 {sRB}, {sM0}, {RB0}\ns_add_u32 {sR15}, {sM0}, {R15}\ns_add_u32 m0, {sM0}, {STG}")
for q in range(1, 8): A(f"s_mov_b32 {sT(q)}, {q*524288}")
A(f"""v_mov_b32 {vWr}, v14
s_lshl_b32 s52, {sN}, 8
s_add_u32 s52, s52, {EPOCH_OFF}
s_waitcnt lgkmcnt(0)
s_mov_b32 s8, s18
s_mov_b32 s9, s19
s_mov_b32 s4, s16
s_mov_b32 s5, s17""")
if OPT.get("pst"): A("s_mov_b32 s75, s72"); stamp()
for k in range(4):
    A(f"buffer_load_dwordx4 v14, s[8:11], s49 offen lds")
    if k < 3: A(f"s_add_u32 m0, m0, 4096\ns_add_u32 s49, s49, 262144")
A(f"s_add_u32 s32, s30, {MISC}\ns_addc_u32 s33, s31, 0\ns_load_dword {sE}, s[32:33], s52")
def xdma_list(slot, soff):
    L = []
    for k in range(4):
        L.append([f"s_add_u32 m0, {sM0}, {XS[slot] + 4096*k}", f"buffer_load_dwordx4 {vX[k]}, s[4:7], {soff} offen lds"])
    L.append([f"s_add_u32 m0, s58, {XS[slot]}", f"buffer_load_dword {vX[4]}, s[4:7], {soff} offen lds"])
    return L
for m0, ld in xdma_list(0, sXo): A(m0 + "\ns_nop 0\n" + ld)
def wdma(slot, q): return [f"s_add_u32 m0, {sRB}, {slot*4096}" if slot < 15 else f"s_mov_b32 m0, {sR15}", f"buffer_load_dwordx4 {vWr}, s[8:11], {sT(q)} offen lds"]
for q in range(8): m0, ld = wdma(q, q); A(m0 + "\ns_nop 0\n" + ld)
if OPT.get("pst"): stamp()
NWARM = int(OPT.get("warm", 2))
A(f"v_add_u32 {vWr}, {2*131072}, v14")
A(f"""v_and_b32 v13, 15, {vLane}
v_lshrrev_b32 v15, 4, {vLane}
v_lshrrev_b32 v150, 1, v13
v_and_b32 v150, 2, v150
v_xor_b32 v150, v150, v15
v_lshlrev_b32 v150, 4, v150
v_lshl_add_u32 {vR0}, v13, 6, v150
v_add_u32 v13, 1, v13
v_lshrrev_b32 v150, 1, v13
v_and_b32 v150, 2, v150
v_xor_b32 v150, v150, v15
v_lshlrev_b32 v150, 4, v150
v_lshl_add_u32 {vR1}, v13, 6, v150
s_mul_i32 s52, {sW}, {2*CL}
v_add_u32 {vSO}, s52, {vL16}
v_add_u32 {vSE1}, {2*CL}, {vSO}
v_lshrrev_b32 v13, 2, {vLane}
v_add_u32 v15, 1, v13
v_xor_b32 v13, v13, v15
v_lshrrev_b32 v13, 1, v13
v_and_b32 v13, 2, v13
v_and_b32 v150, 3, {vLane}
v_xor_b32 v13, v13, v150
v_lshlrev_b32 v13, 4, v13
v_lshl_add_u32 v13, v15, 6, v13
s_cmp_eq_u32 {sW}, 3
s_cselect_b64 vcc, -1, 0
v_cndmask_b32 {vSE1}, {vSE1}, v13, vcc
v_bfe_u32 v13, {vLane}, 4, 1
v_mul_u32_u24 v13, {CL}, v13
v_and_b32 v15, 15, {vLane}
v_lshl_add_u32 v13, v15, 2, v13
s_add_u32 s52, s52, 1024
v_add_u32 {vT}, s52, v13
v_mov_b32 {vR0x}, {vR0}
v_mov_b32 {vR1x}, {vR1}
v_mov_b32 {vSOx}, {vSO}
v_mov_b32 {vTx}, {vT}""")
A(f"""v_bfe_u32 v13, {vLane}, 3, 2
v_xor_b32 v13, {sW}, v13
v_lshlrev_b32 v13, 5, v13
v_and_b32 v15, 3, {vLane}
v_lshl_add_u32 v13, v15, 3, v13
v_bfe_u32 v15, {vLane}, 2, 2
v_lshl_add_u32 v13, v15, 7, v13
v_lshrrev_b32 v15, 4, {vLane}
v_lshl_add_u32 v13, v15, 10, v13
v_add_u32 {vTr0}, {RB0}, v13
v_add_u32 {vTr15}, {R15}, v13
v_add_u32 v14, {STG}, v13""")
A(f"""s_mul_i32 s52, {sNu}, {WSTREAM}
s_add_u32 s12, s30, s52
s_addc_u32 s13, s31, 0
s_mov_b32 s14, {WSTREAM}
s_mov_b32 s15, 0x20000
s_mov_b32 s34, {4<<20}
s_mov_b32 s35, 0x20000""")
if OPT.get("pst"): stamp()
A(f"s_waitcnt vmcnt(13)\ns_barrier")
stamp()
for k in range(4):
    A(f"ds_read_b64_tr_b16 v[{T0+4*k}:{T0+4*k+1}], v14 offset:{4096*k}\nds_read_b64_tr_b16 v[{T0+4*k+2}:{T0+4*k+3}], v14 offset:{4096*k+512}")
def addpair(d, x, y, t):
    return [f"v_lshlrev_b32 v{t}, 16, v{x}", f"v_lshlrev_b32 v{t+1}, 16, v{y}", f"v_and_b32 v{t+2}, 0xffff0000, v{x}",
            f"v_and_b32 v{t+3}, 0xffff0000, v{y}", f"v_add_f32 v{t}, v{t}, v{t+1}", f"v_add_f32 v{t+2}, v{t+2}, v{t+3}",
            f"v_cvt_pk_bf16_f32 v{d}, v{t}, v{t+2}"]
A(f"s_add_u32 s50, s53, 8192\ns_add_u32 s51, s53, 16384\ns_waitcnt lgkmcnt(0)")
A(f"s_add_u32 {sNA}, {sE}, 1\ns_mul_i32 {sNB}, {sE}, 0x9E3779B1\ns_add_u32 {sNB}, {sNB}, 0x7F4A7C15")
A(f"""buffer_store_dwordx4 v[{T0}:{T0+3}], {vL16}, s[12:15], s53 offen sc1
buffer_store_dwordx4 v[{T0+8}:{T0+11}], {vL16}, s[12:15], s53 offen offset:1024 sc1
buffer_store_dwordx4 v[{T0+4}:{T0+7}], {vL16}, s[12:15], s50 offen sc1
buffer_store_dwordx4 v[{T0+12}:{T0+15}], {vL16}, s[12:15], s50 offen offset:1024 sc1""")
for h in range(2):
    for d in range(4):
        for x in addpair(T0+16+4*h+d, T0+8*h+d, T0+8*h+4+d, T0+24): A(x)
    A(f"buffer_store_dwordx4 v[{T0+16+4*h}:{T0+19+4*h}], {vL16}, s[12:15], s51 offen offset:{1024*h} sc1")
for q in range(8): m0, ld = wdma(8 + q, q); A(m0 + "\ns_nop 0\n" + ld)
for m0, ld in xdma_list(1, sXo1): A(m0 + "\ns_nop 0\n" + ld)
A(f"""v_lshrrev_b32 v13, 4, {vLane}
v_lshlrev_b32 v13, 3, v13
v_and_b32 v15, 3, {vLane}
v_lshl_add_u32 v13, v15, 1, v13
v_add_u32 v13, s48, v13
global_load_ushort v{vG}, v13, s[22:23]
global_load_ushort v{vG+1}, v13, s[24:25]
global_load_ushort v{vG+2}, v13, s[20:21]""")
if NWARM >= 1:
    A(f"""s_and_b32 s50, {sM}, 7
s_lshl_b32 s50, s50, 2
s_add_u32 s50, s50, {sW}
s_lshr_b32 s51, s50, 1
s_lshl_b32 s51, s51, 18
s_and_b32 s50, s50, 1
s_lshl_b32 s50, s50, 13
s_add_u32 s50, s50, s51
s_lshl_b32 s51, {sN}, 7
s_add_u32 s50, s50, s51
s_add_u32 s50, s50, 131072
v_and_b32 v13, 15, {vLane}
v_lshlrev_b32 v13, 9, v13
buffer_load_dword v147, v13, s[8:11], s50 offen""")
if NWARM >= 2:
    A(f"""s_getpc_b64 s[96:97]
L_pc:
s_mov_b32 s98, L_codeend - L_pc
s_mov_b32 s99, 0x20000
s_lshr_b32 s50, s2, 3
s_and_b32 s50, s50, 7
s_lshl_b32 s50, s50, 2
s_add_u32 s50, s50, {sW}
s_lshl_b32 s50, s50, 10
v_and_b32 v13, 7, {vLane}
v_lshlrev_b32 v13, 7, v13
buffer_load_dword v147, v13, s[96:99], s50 offen""")
if OPT.get("pst"): stamp()
A(f"""v_subrev_u32 {vWr}, 131072, {vWr}
s_xor_b32 {sM0}, {sM0}, {PAIR}
s_xor_b32 s58, s58, {PAIR}
s_add_u32 {sXo}, {sXo}, 64
s_add_u32 {sXo1}, {sXo}, 512""")
A(f"""s_lshl_b32 s52, {sM}, 1
s_add_u32 s52, s52, {sB}
s_lshl_b32 s52, s52, 3
s_lshl_b32 s53, {sN}, 9
s_add_u32 s52, s52, s53
v_mov_b32 v150, {sNA}
v_mov_b32 v151, {sNB}
v_mov_b32 v148, s52
v_cmp_eq_u32 s[56:57], 0, v0
v_lshl_add_u32 v149, {vLane}, 3, s53
s_waitcnt vmcnt({22 + NWARM})
s_barrier""")
stamp()
def trrd(dst, slot):
    v, off = (vTr0, slot*4096) if slot < 15 else (vTr15, 0)
    return [f"ds_read_b64_tr_b16 v[{dst}:{dst+1}], {v} offset:{off}", f"ds_read_b64_tr_b16 v[{dst+2}:{dst+3}], {v} offset:{off+512}"]
SA, SBr, SD, ST = 160, 164, 168, 172
RA, RB, RD, RT = 176, 177, 178, 180
def s_piece(e, xs, ss):
    rd = [f"ds_read_b128 v[{SA}:{SA+3}], {vSOx} offset:{XS[xs] + OOFF + e*CL}",
          f"ds_read_b128 v[{SBr}:{SBr+3}], {vSOx if e == 0 else vSE1} offset:{XS[xs] + (CL if e == 0 else 0)}"]
    va = []
    for d in range(4): va += addpair(SD+d, SA+d, SBr+d, ST)
    wr = [f"ds_write_b128 {vSO}, v[{SD}:{SD+3}] offset:{SS[ss] + e*CL}"]
    return rd, va, wr
def r_piece(xs, ss):
    rd = [f"ds_read_b32 v{RA}, {vTx} offset:{XS[xs] + OOFF}", f"ds_read_b32 v{RB}, {vTx} offset:{XS[xs] + CL}"]
    return rd, addpair(RD, RA, RB, RT), [f"ds_write_b32 {vT}, v{RD} offset:{SS[ss]}"]
def frag_reads(p, base):
    r0, r1 = (vR0, vR1) if p == "c" else (vR0x, vR1x)
    return [f"ds_read_b128 {xf(p, s)}, {r0 if s < 8 else r1} offset:{base + (s & 7)*CL}" for s in range(15)]
rd, va, wr = s_piece(0, 0, 0); rd2, va2, wr2 = r_piece(0, 0)
for x in rd + rd2: A(x)
fr = frag_reads("a", XS[0])
pre = []
for q in range(8): pre += trrd(RA_ + 4*q, q) + fr[2*q:2*q+2]
for x in pre[:10]: A(x)
A("s_waitcnt lgkmcnt(10)")
rest = pre[10:]
for x in va + wr + va2 + wr2:
    A(x)
    if rest: A(rest.pop(0))
assert not rest
PR = ["a", "b", "c", "a", "b", "c"]; NQ = [8, 8, 8, 8, 7, 8]
BM = OPT.get("bmode", "sc1")
def bload(k, q):
    so = sWo if BM != "l1" else "0"
    return f"buffer_load_dwordx4 {bf(PR[k % 6], q)}, {vL16}, s[12:15], {so} offen offset:{1024*(q & 3)} {dict(sc1='sc1', plain='', l1='', nt='nt', sc1nt='sc1 nt')[BM]}"
SADD = f"s_add_u32 {sWo}, {sWo}, 4096"
NX = [int(c) for c in OPT.get("nx", "221")]
def layout(k):
    p = PR[k]; par = k // 3; t = par; n = 8 * NQ[k]
    fill = [[] for _ in range(64)]
    bs = [1, 9, 17, 24, 33, 40, 49, 56] if n == 64 else [1, 9, 17, 24, 33, 40, 49, 53]
    seq = [(k+2, 6), (k+2, 7)] + [(k+3, q) for q in range(6)]
    for sl, (kk, q) in zip(bs, seq):
        if q < NQ[kk % 6]: fill[sl].append((bload(kk, q), ("B", kk % 6, q)))
    adds = [(bs[1] + 1, [SADD]), (bs[5] + 1, [SADD])]
    if k == 3 and ROT:
        adds[0] = (bs[1] + 1, [SADD, f"s_cmp_eq_u32 {sWo}, {WSTREAM}"])
        adds += [(bs[1] + 2, [f"s_cselect_b32 {sWo}, 0, {sWo}", f"s_cmp_eq_u32 {sCnt}, 1"]), (bs[1] + 3, [f"s_cselect_b32 {sWo}, s59, {sWo}"])]
    for sl, L in adds: fill[sl] += [(x, None) for x in L]
    xl = xdma_list(par, sXo if par == 0 else sXo1)
    x0 = sum(NX[:k % 3]); xs = [13, 29, 45][:NX[k % 3]] if NX[k % 3] > 1 else [13]
    for j in range(NX[k % 3]):
        fill[xs[j] - 1].append((xl[x0 + j][0], None)); fill[xs[j]].append((xl[x0 + j][1], ("X", par, x0 + j)))
    for q2 in range(1, 4): fill[16*q2 - 1].append((("VW", ("B", k, min(2*q2 + 1, NQ[k] - 1))), None))
    if p == "a": piece = s_piece(1, t, t); R = frag_reads("b", XS[t] + OOFF)
    elif p == "b": piece = r_piece(1-t, 1-t); R = frag_reads("c", SS[t])
    else: piece = s_piece(0, 1-t, 1-t); R = frag_reads("a", XS[1-t])
    rd, va, wr = piece
    misc = []
    if k == 0: misc = [[f"s_cmp_eq_u32 {sCnt}, 1", "s_cselect_b32 s6, 0, s6"]]
    seq = misc + [rd[0], rd[1], R[0], R[1], R[2], R[3], ("LW", rd[1])]
    v = list(va); rr = R[4:]
    per = 3 if p != "b" else 1
    while rr:
        for _ in range(per):
            if v: seq.append(v.pop(0))
        seq.append(rr.pop(0))
    seq += v + wr
    if k == 3: seq += [[f"v_xor_b32 {x}, {PAIR}, {x}"] for x in (vR0x, vR1x, vSOx, vSE1, vTx)]
    if k == 5: seq += [[f"s_xor_b32 {sM0}, {sM0}, {PAIR}", f"s_xor_b32 s58, s58, {PAIR}"], [f"s_add_u32 {sXo}, {sXo}, {0 if OPT.get('xfix') else 64}", f"s_and_b32 {sXo}, {sXo}, 0x1ff"],
                       [f"s_add_u32 {sXo1}, {sXo}, 512", f"s_sub_u32 {sCnt}, {sCnt}, 1"], f"s_cmp_lg_u32 {sCnt}, 0"]
    free = [i for i in range(n - 1) if not fill[i]]
    shared = [i for i in range(n - 1) if len(fill[i]) == 1 and fill[i][0][1] is None]
    lim = n - 7
    need = len(seq) - (5 if k == 3 else 4 if k == 5 else 0)
    sl = [i for i in free if i <= lim]
    sh = [i for i in shared if i <= lim]
    dup = [i for i in free if 18 <= i <= lim][::5]
    while len(sl) < need:
        if sh: sl.append(sh.pop(0))
        else: sl.append(dup.pop(0))
    sl = sorted(sl)[:need] if len(sl) == need else sorted(sl)
    if len(sl) > need:
        sl = [sl[round(i * (len(sl) - 1) / (need - 1))] for i in range(need)] if OPT.get("spread", "1") == "1" else sl[:need]
    tail = [i for i in range(sl[-1] + 1, n) if not fill[i] or (len(fill[i]) == 1 and fill[i][0][1] is None)]
    sl += tail
    assert len(sl) >= len(seq), (k, len(sl), len(seq))
    for i, it in zip(sl, seq):
        for x in (it if isinstance(it, list) else [it]): fill[i].append((x, None))
    return fill
fills = [layout(k) for k in range(6)]
starts = []
for k in range(6):
    m = [("B", k, 1)]
    if PR[k] == "b": m.append(("X", 1 - k // 3, 4))
    starts.append(m)
flat = []
for k in range(6):
    flat.append((k, -1, ("VS", starts[k]), None))
    for i in range(64):
        for (x, tag) in fills[k][i]: flat.append((k, i, x, tag))
def vcount(idx, marker):
    n = 0
    for d in range(1, len(flat)):
        tag = flat[idx - d][3]
        if tag == marker: return n
        if tag is not None: n += 1
    assert False
res = {}
for idx, (k, i, x, tag) in enumerate(flat):
    if isinstance(x, tuple):
        if x[0] == "VS": y = f"s_waitcnt vmcnt({min(vcount(idx, m) for m in x[1])}) lgkmcnt(0)"
        elif x[0] == "VW": y = f"s_waitcnt vmcnt({vcount(idx, x[1])})"
        else:
            n = 0; d = 1
            while flat[idx - d][2] != x[1]:
                if isinstance(flat[idx - d][2], str) and flat[idx - d][2].startswith("ds_"): n += 1
                d += 1
            y = f"s_waitcnt lgkmcnt({n})"
    else: y = x
    res.setdefault((k, i), []).append(y)
def product(p, par, fill, nq, bfn=None, zero=False):
    bfn = bfn or bf
    i = 0
    if PROF == 1:
        fill[52].append("s_memtime s[70:71]")
        fill[4].append("s_mov_b32 m0, s72"); fill[6].append("v_writelane_b32 v255, s70, m0"); fill[7].append("s_add_u32 s72, s72, 1")
    for q2 in range(4):
        for j in range(8):
            for q in (2*q2, 2*q2+1):
                if q >= nq: continue
                A(f"v_mfma_f32_16x16x32_bf16 {acc(p, j)}, {bfn(p, q)}, {xf(p, j+q)}, {0 if zero and q == 0 else acc(p, j)}")
                for x in fill[i]:
                    ab = OPT.get("abl", "")
                    if "V" in ab and x.startswith("v_") and "xor" not in x and "writelane" not in x: continue
                    if "B" in ab and x.startswith("buffer_load") and "lds" not in x: continue
                    if "X" in ab and x.startswith("buffer_load") and "lds" in x: continue
                    if "R" in ab and x.startswith("ds_read_b128 a"): continue
                    if "S" in ab and (x.startswith("ds_write") or x.startswith("ds_read_b128 v") or x.startswith("ds_read_b32")): continue
                    A(x)
                i += 1
    assert all(not f for f in fill[i:]), (p, par)
def place(fill, items, slots):
    assert len(items) <= len(slots), (len(items), len(slots))
    for it, s in zip(items, slots): fill[s] += it if isinstance(it, list) else [it]


G0 = [0, 64, 128, 192, 256, 312, 376]
items = []
def item(text, e, d, preds=(), cost=None, tag=None, lw=None, vw=None):
    t = text if isinstance(text, list) else [text]
    c = cost if cost is not None else len(t) + (lw is not None) + (vw is not None)
    items.append(dict(t=t, e=e, d=d, preds=list(preds), cost=c, tag=tag, lw=lw, vw=vw, g=None)); return len(items) - 1
def chain(L, e, d, first_preds=(), lw=None, vw=None):
    ids = []
    for i, x in enumerate(L):
        ids.append(item(x, e, d, (list(first_preds) if i == 0 else [(ids[-1], 0)]), lw=lw if i == 0 else None, vw=vw if i == 0 else None))
    return ids
def fixed(text, g, tag=None, cost=None, vw=None): return item(text, g, g, cost=cost, tag=tag, vw=vw)
def fdma(pair, g, tag): fixed(pair[0], g - 1); fixed(pair[1], g, tag=tag, cost=2)
GB1 = int(OPT.get("gb1", 8)); GB3 = int(OPT.get("gb3", 150))
fixed("s_barrier", GB1, vw=("Wb0", 7)); fixed("s_barrier", 127, vw=("Wa1", 7)); fixed("s_barrier", GB3, vw=("Wb1", 6))
for q in range(8): fdma(wdma(q, q), GB1 + 3 + 5*q, ("Wa1", q))
x2 = xdma_list(0, sXo); x3 = xdma_list(1, sXo1)
for j, g in enumerate([52, 58, 112, 120, 136]): fdma(x2[j], g, ("X2", j))
fixed(f"v_add_u32 {vWr}, {2*131072}, {vWr}", 62)
fixed(["s_mov_b64 exec, s[56:57]", f"buffer_store_dwordx2 v[150:151], v148, s[32:35], 0 offen offset:{FLAG_OFF} sc1", "s_mov_b64 exec, -1"], 64, tag=("F", 0))
for q in range(7): fdma(wdma(8 + q, q), 68 + 6*q, ("Wb1", q))
fdma(x3[0], 200, ("X", 1, 0))
PG = int(OPT.get("pollg", 230))
fixed(f"buffer_load_dwordx2 v[150:151], v149, s[32:35], 0 offen offset:{FLAG_OFF} sc1", PG, tag=("P", 0), cost=2)
fixed(f"v_cmp_eq_u32 vcc, {sNA}, v150", 251, vw=("P", 0)); fixed(f"v_cmp_eq_u32 s[50:51], {sNB}, v151", 252)
fixed(["s_and_b64 vcc, vcc, s[50:51]", "s_cmp_eq_u64 vcc, -1"], 253); fixed(["s_cbranch_scc0 L_spin", "L_spin_ret:"], 254, cost=1)
for j, x in enumerate((vR0x, vR1x, vSOx, vSE1, vTx)): fixed(f"v_xor_b32 {x}, {PAIR}, {x}", 250 + j)
emu = []; started = False
for (k, i, x, tag) in flat:
    if k < 3: continue
    if tag and tag[0] == "B" and tag[1] == 0: started = True
    if not started: continue
    if tag or x == SADD: emu.append((x, tag))
nv = sum(1 for x, tag in emu if tag) - 6
gs = [257 + round(j * 68 / (nv - 1)) for j in range(nv)] + [312 + z for z in (17, 24, 33, 40, 49, 56)]
j = 0
for x, tag in emu:
    if tag is None: fixed(x, gs[j-1] + 1)
    elif tag[0] == "B": fixed(x, gs[j], tag=tag, cost=2); j += 1
    else: fdma(x3[tag[2]], gs[j], tag); j += 1
for j, L in enumerate([[f"s_xor_b32 {sM0}, {sM0}, {PAIR}", f"s_xor_b32 s58, s58, {PAIR}"], [f"s_add_u32 {sXo}, {sXo}, 64", f"s_add_u32 {sXo1}, {sXo1}, 64"]]): fixed(L, 372 + j)
def piece_chain(piece, e, d, preds=()):
    rd, va, wr = piece
    r = chain(rd, e, d, preds)
    return chain(va + wr, e, d, [(r[-1], 6)], lw=r[-1])
chain(frag_reads("b", XS[0] + OOFF), 0, 56)
sp = piece_chain(s_piece(1, 0, 0), 0, 57)
sp = piece_chain(s_piece(0, 1, 1), 64, 240, [(sp[-1], 0)])
sp = piece_chain(s_piece(1, 1, 1), 64, 248, [(sp[-1], 0)])
sp = piece_chain(s_piece(0, 0, 0), 256, 369, [(sp[-1], 0)])
piece_chain(r_piece(1, 1), 64, 240); piece_chain(r_piece(0, 0), 256, 369)
chain(frag_reads("c", SS[0]), 64, 120); chain(frag_reads("a", XS[1]), 64, 184)
chain(frag_reads("b", XS[1] + OOFF), 128, 248); chain(frag_reads("c", SS[1]), 256, 304); chain(frag_reads("a", XS[0]), 256, 368)
FT = 152
prev = None; tb = []; fs0 = []
for q in range(8):
    tb.append(chain(trrd(RB_ + 4*q, 8 + q), GB1 + 1, 56, [(tb[-1][-1], 0)] if q else []))
for q in range(8):
    va = sum((addpair(112 + 4*q + d, RA_ + 4*q + d, RB_ + 4*q + d, FT) for d in range(4)), [])
    fs0.append(chain(va, 0, 128 + 16*(q >> 1) - 3, [(tb[q][-1], 6)] + ([(fs0[-1][-1], 0)] if q else []), lw=tb[q][-1]))
ta = []; tb1 = []
for q in range(8):
    ta.append(chain(trrd(RA_ + 4*q, q), 128, 184, [(fs0[q][-1], 0)] + ([(ta[-1][-1], 0)] if q else [])))
for q in range(7):
    tb1.append(chain(trrd(RB_ + 4*q, 8 + q), GB3 + 1, 248, [(fs0[q][-1], 0)] + ([(tb1[-1][-1], 0)] if q else [])))
last = fs0[-1][-1]
for q in range(7):
    va = sum((addpair(112 + 4*q + d, RA_ + 4*q + d, RB_ + 4*q + d, FT) for d in range(4)), [])
    c = chain(va, 128 + 16*((q >> 1) + 1), 312 + 16*(q >> 1) - 3, [(tb1[q][-1], 6), (ta[q][-1], 6), (last, 0)], lw=[tb1[q][-1], ta[q][-1]]); last = c[-1]
chain(trrd(112 + 28, 7), 192, 248, [(ta[7][-1], 0)])
for i in reversed(range(len(items))):
    for (p, dist) in items[i]["preds"]:
        items[p]["d"] = min(items[p]["d"], items[i]["d"] - max(dist, 0.5))
fillR = [[] for _ in range(376)]
load = [0] * 376
for it in items:
    if it["e"] == it["d"] and not it["preds"]: it["g"] = it["e"]; load[it["e"]] += it["cost"]; fillR[it["e"]].append(it)
CAP = 2
for g in range(376):
    while True:
        ready = [it for it in items if it["g"] is None and it["e"] <= g and all(items[p]["g"] is not None and items[p]["g"] + dist <= g for p, dist in it["preds"])]
        if not ready: break
        it = min(ready, key=lambda z: z["d"])
        if load[g] + 1 > CAP and it["d"] > g: break
        it["g"] = g; load[g] += it["cost"]; fillR[g].append(it)
assert all(it["g"] is not None for it in items)
late = [(it["t"][0], it["g"], it["d"]) for it in items if it["g"] > it["d"] + 0.6]
assert not late, late
sys.stderr.write("R overflow slots: %d, loads: %s\n" % (sum(max(0, l - 2) for l in load), "".join(str(min(l, 9)) for l in load)))
hist = [("P", 9)]*4 + [("X0", 0)]*5 + [("Wa0", q) for q in range(8)] + [("ST", q) for q in range(6)] + [("Wb0", q) for q in range(8)] + [("X1", 0)]*5 + [("G", 0)]*(3 + NWARM)
ldsq = []
def vw(marker):
    k = len(hist) - 1 - hist[::-1].index(marker); return len(hist) - 1 - k
outR = [[] for _ in range(376)]
bstart = {}
for g in range(376):
    if g in G0:
        k = G0.index(g)
        m = {1: ("X1", 0), 4: ("X2", 4)}.get(k)
        bstart[k] = f"s_waitcnt vmcnt({vw(m)}) lgkmcnt(0)" if m else "s_waitcnt lgkmcnt(0)"
    for it in fillR[g]:
        if it["lw"] is not None:
            srcs = [items[z] for z in (it["lw"] if isinstance(it["lw"], list) else [it["lw"]])]
            ns = [ldsq[::-1].index(id(src)) for src in srcs if src["g"] >= max(z for z in G0 if z <= g)]
            if ns: outR[g].append(f"s_waitcnt lgkmcnt({min(min(ns), 15)})")
        if it["vw"] is not None: outR[g].append(f"s_waitcnt vmcnt({vw(it['vw'])})")
        for x in it["t"]:
            outR[g].append(x)
            if x.startswith("ds_"): ldsq.append(id(it))
        if it["tag"]: hist.append(it["tag"])
if PROF == 2:
    for k in range(14): outR[27*k + 1].append(f"s_memtime s[{74+2*k}:{75+2*k}]")
A(f"s_mov_b32 {sWo}, 49152\ns_mov_b32 {sCnt}, 7")
if PROF: A("s_memtime s[70:71]\ns_mov_b32 s72, 0\nv_mov_b32 v255, 0")
def bfR(p, q):
    if p == "c": return bf(p, q)
    r = {"a": RA_, "b": RB_}[p] + 4*q; return f"v[{r}:{r+3}]"
for k in range(6):
    A(bstart[k])
    if k == 0: stamp()
    if PR[k] == "b": A("s_barrier")
    product(PR[k], k // 3, outR[G0[k]:G0[k+1]] + [[] for _ in range(64 - G0[k+1] + G0[k])], NQ[k], bfR, k < 3)
stamp()
if PROF == 2:
    A("s_waitcnt lgkmcnt(0)")
    for k in range(14): A(f"v_writelane_b32 v255, s{74+2*k}, {k}")
    A("s_mov_b32 s72, 14")
A("L_loop:")
for k in range(6):
    A(res[(k, -1)][0])
    if PR[k] == "b": A("s_barrier")
    product(PR[k], k // 3, [list(res.get((k, i), [])) for i in range(64)], NQ[k])
A("s_cbranch_scc1 L_loop")
stamp()
a_, b_, c_ = ACC["a"], ACC["b"], ACC["c"]
def pr(r): return f"v[{r}:{r+1}]"
for i in range(4): A(f"v_mov_b32_dpp v{T0+i}, v{a_+i} row_shl:1 row_mask:0xf bank_mask:0xf bound_ctrl:0")
A(f"""v_and_b32 v13, 15, {vLane}
s_cmp_eq_u32 {sM}, 31
s_cselect_b32 s50, 5, 16
s_cselect_b32 s51, 5, 15
v_cmp_gt_u32 s[52:53], s50, v13
v_cmp_gt_u32 s[54:55], s51, v13
s_nop 3""")
for j in range(8):
    for h in range(2):
        A(f"v_pk_add_f32 {pr(c_+4*j+2*h)}, {pr(c_+4*j+2*h)}, {pr(b_+4*j+2*h)} neg_lo:[0,1] neg_hi:[0,1]")
    for h in range(2):
        A(f"v_pk_add_f32 {pr(b_+4*j+2*h)}, {pr(b_+4*j+2*h)}, {pr(a_+4*j+2*h)}")
    for h in range(2):
        nx = a_+4*(j+1)+2*h if j < 7 else T0+2*h
        A(f"v_pk_add_f32 {pr(c_+4*j+2*h)}, {pr(c_+4*j+2*h)}, {pr(nx)} neg_lo:[0,1] neg_hi:[0,1]")
A('s_waitcnt vmcnt(0)')
for i in range(4): A(f"v_cndmask_b32 v{T0+4+i}, 0, v{c_+28+i}, s[54:55]")
SUM, SQ = 112, 116
vals = [b_+4*j for j in range(8)] + [c_+4*j for j in range(7)] + [T0+4]
for k, r in enumerate(vals):
    for h in range(2):
        if k == 1: A(f"v_pk_add_f32 {pr(SUM+2*h)}, {pr(vals[0]+2*h)}, {pr(r+2*h)}")
        elif k > 1: A(f"v_pk_add_f32 {pr(SUM+2*h)}, {pr(SUM+2*h)}, {pr(r+2*h)}")
        if k == 0: A(f"v_pk_mul_f32 {pr(SQ+2*h)}, {pr(r+2*h)}, {pr(r+2*h)}")
        else: A(f"v_pk_fma_f32 {pr(SQ+2*h)}, {pr(r+2*h)}, {pr(r+2*h)}, {pr(SQ+2*h)}")
for i in range(8): A(f"v_cndmask_b32 v{SUM+i}, 0, v{SUM+i}, s[52:53]")
def rowreduce(base):
    for sh in (8, 4, 2, 1):
        for i in range(8): A(f"v_add_f32_dpp v{base+i}, v{base+i}, v{base+i} row_ror:{sh} row_mask:0xf bank_mask:0xf")
rowreduce(SUM)
A(f"""v_cmp_eq_u32 vcc, 1, v13
v_cmp_eq_u32 s[50:51], 2, v13
v_cmp_eq_u32 s[56:57], 3, v13
v_cmp_gt_u32 s[58:59], 4, v13
v_cndmask_b32 v120, v{SUM}, v{SUM+1}, vcc
v_cndmask_b32 v122, v{SQ}, v{SQ+1}, vcc
v_cndmask_b32 v120, v120, v{SUM+2}, s[50:51]
v_cndmask_b32 v122, v122, v{SQ+2}, s[50:51]
v_cndmask_b32 v120, v120, v{SUM+3}, s[56:57]
v_cndmask_b32 v122, v122, v{SQ+3}, s[56:57]
v_mov_b32 v121, {sNA}
v_mov_b32 v123, {sNB}
s_lshl_b32 s50, {sB}, 4
s_add_u32 s50, s50, {sNu}
s_lshl_b32 s50, s50, 13
s_add_u32 s50, s50, {STAT_OFF}
s_lshl_b32 s51, {sM}, 8
s_add_u32 s51, s51, s50
v_lshrrev_b32 v14, 4, {vLane}
v_lshlrev_b32 v14, 6, v14
v_and_b32 v15, 3, v13
v_lshl_add_u32 v14, v15, 4, v14
v_lshrrev_b32 v15, 2, v13
v_lshl_add_u32 v14, v15, 8, v14
s_mov_b64 exec, s[58:59]
buffer_store_dwordx4 v[120:123], v14, s[32:35], s51 offen sc1
s_mov_b64 exec, -1""")
stamp()
for k in range(3): A(f"v_lshlrev_b32 v{vG+k}, 16, v{vG+k}")
A(f"""s_mul_i32 s51, {sB}, {7985*512}
s_add_u32 s8, s26, s51
s_addc_u32 s9, s27, 0
s_mov_b32 s10, {7985*512}
s_mul_i32 s51, {sM}, {255*512}
s_lshl_b32 s56, {sNu}, 5
s_add_u32 s51, s51, s56
v_lshrrev_b32 v15, 4, {vLane}
v_lshlrev_b32 v15, 3, v15
v_lshl_add_u32 v15, v13, 13, v15
v_add_u32 v15, s51, v15
v_add_u32 v136, 4096, v15
v_mov_b32 v137, 0x40000000
v_cndmask_b32 v137, v137, v136, s[54:55]
s_add_u32 s51, s50, 4096
s_mov_b32 {sCnt}, 30000
L_poll2:""")
P = 152
if int(OPT.get("psleep", 0)): A(f"s_sleep {OPT['psleep']}")
for k in range(8):
    A(f"buffer_load_dwordx4 v[{P+4*k}:{P+4*k+3}], v14, s[32:35], {'s50' if k < 4 else 's51'} offen offset:{(k & 3)*1024} sc1")
A(f"s_sub_u32 {sCnt}, {sCnt}, 1\ns_cbranch_scc1 L_poll2_done")
for k in range(8):
    A(f"s_waitcnt vmcnt({7-k})")
    A(f"v_xor_b32 v{P+4*k+1}, {sNA}, v{P+4*k+1}\nv_xor_b32 v{P+4*k+3}, {sNB}, v{P+4*k+3}")
    if k == 0: A(f"v_or_b32 v138, v{P+1}, v{P+3}")
    else: A(f"v_or3_b32 v138, v138, v{P+4*k+1}, v{P+4*k+3}\nv_add_f32 v{P}, v{P}, v{P+4*k}\nv_add_f32 v{P+2}, v{P+2}, v{P+4*k+2}")
A("""v_cmp_ne_u32 vcc, 0, v138
s_cbranch_vccnz L_poll2
L_poll2_done:""")
stamp()
import struct
def f2h(x): return hex(struct.unpack("<I", struct.pack("<f", x))[0])
DP = "row_mask:0xf bank_mask:0xf"
A(f"""s_mov_b32 s50, {f2h(1.0/7985)}
s_mov_b32 s51, {f2h(1e-5)}
v_add_f32_dpp v{P}, v{P}, v{P} row_ror:4 {DP}
v_add_f32_dpp v{P+2}, v{P+2}, v{P+2} row_ror:4 {DP}
s_nop 0
v_add_f32_dpp v{P}, v{P}, v{P} row_ror:8 {DP}
v_add_f32_dpp v{P+2}, v{P+2}, v{P+2} row_ror:8 {DP}
v_mul_f32 v{P}, s50, v{P}
v_mul_f32 v{P+2}, s50, v{P+2}
v_fma_f32 v{P+2}, -v{P}, v{P}, v{P+2}
v_max_f32 v{P+2}, 0, v{P+2}
v_add_f32 v{P+2}, s51, v{P+2}
v_rsq_f32 v{P+2}, v{P+2}
v_add_f32 v{P}, v{P}, v{vG+2}
v_sub_f32 v{P}, v{vG+2}, v{P}
v_mul_f32 v{P+2}, v{P+2}, v{vG}
v_fma_f32 v{P}, v{P}, v{P+2}, v{vG+1}""")
A(f"""s_lshl_b32 s50, {sN}, 1
s_or_b32 s51, {sM}, {sB}
s_cmp_eq_u32 s51, 0
s_cbranch_scc0 L_noep
v_mov_b32 v138, {sNA}
s_lshl_b32 s50, {sN}, 8
s_add_u32 s50, s50, {EPOCH_OFF}
v_mov_b32 v139, s50
v_cmp_eq_u32 vcc, 0, v0
s_and_saveexec_b64 s[50:51], vcc
buffer_store_dword v138, v139, s[32:35], 0 offen sc1
s_mov_b64 exec, s[50:51]
L_noep:""")
for i in range(4):
    A(f"v_mov_b32_dpp v{SQ+i}, v{P+2} quad_perm:[{i},{i},{i},{i}] {DP}\nv_mov_b32_dpp v{SUM+i}, v{P} quad_perm:[{i},{i},{i},{i}] {DP}")
A(f"""v_mov_b32 v140, {f2h(-2.302208198)}
v_mov_b32 v141, {f2h(-2.302208198)}
v_mov_b32 v142, {f2h(-0.1029432397)}
v_mov_b32 v143, {f2h(-0.1029432397)}""")
for j in range(8):
    regs = [b_+4*j, b_+4*j+2, c_+4*j, c_+4*j+2]
    tp = [152 + 2*k for k in range(4)]
    for k, r in enumerate(regs): A(f"v_pk_fma_f32 {pr(r)}, {pr(r)}, {pr(SQ+2*(k&1))}, {pr(SUM+2*(k&1))}")
    for r, t in zip(regs, tp): A(f"v_pk_mul_f32 {pr(t)}, {pr(r)}, {pr(r)}")
    for r, t in zip(regs, tp): A(f"v_pk_fma_f32 {pr(t)}, {pr(t)}, v[142:143], v[140:141]")
    for r, t in zip(regs, tp): A(f"v_pk_mul_f32 {pr(t)}, {pr(t)}, {pr(r)}")
    for t in tp: A(f"v_exp_f32 v{t}, v{t}\nv_exp_f32 v{t+1}, v{t+1}")
    for t in tp: A(f"v_pk_add_f32 {pr(t)}, {pr(t)}, 1.0 op_sel_hi:[1,0]")
    for t in tp: A(f"v_rcp_f32 v{t}, v{t}\nv_rcp_f32 v{t+1}, v{t+1}")
    for r, t in zip(regs, tp): A(f"v_pk_mul_f32 {pr(t)}, {pr(t)}, {pr(r)}")
    d = 160 + 4*(j & 1)
    for k, t in enumerate(tp): A(f"v_cvt_pk_bf16_f32 v{d+k}, v{t}, v{t+1}")
    for par in range(2):
        row = 2*j + par
        va = "v15" if row < 8 else ("v136" if row < 15 else "v137")
        A(f"buffer_store_dwordx2 v[{d+2*par}:{d+2*par+1}], {va}, s[8:11], 0 offen offset:{(row & 7)*512}")
if STAMP:
    stamp()
    A("s_waitcnt vmcnt(0)")
    stamp()
    if STAMP == 2:
        A("s_cmp_eq_u32 s2, 100\ns_cbranch_scc0 L_end\ns_mov_b32 s8, s28\ns_mov_b32 s9, s29\ns_mov_b32 s10, 256\nv_mov_b32 v13, 0\nv_cmp_eq_u32 vcc, 0, v0\ns_and_saveexec_b64 s[50:51], vcc")
        for k in range(1, nstamp[0]):
            A(f"s_sub_u32 s50, s{74+2*k}, s74\nv_mov_b32 v14, s50\nbuffer_store_dword v14, v13, s[8:11], 0 offen offset:{4*k}\ns_nop 1")
        A("s_waitcnt vmcnt(0)\ns_endpgm")
    A(f"s_add_u32 s8, s30, {200<<20}\ns_addc_u32 s9, s31, 0\ns_mov_b32 s10, 65536\ns_lshl_b32 s50, s2, 7\nv_mov_b32 v13, s50\nv_cmp_eq_u32 vcc, 0, v0\ns_and_saveexec_b64 s[50:51], vcc")
    for k in range(nstamp[0]): A(f"v_mov_b32 v14, s{74+2*k}\nv_mov_b32 v15, s{75+2*k}\nbuffer_store_dwordx2 v[14:15], v13, s[8:11], 0 offen offset:{8*k}\ns_nop 1")
if PROF:
    A(f"s_memtime s[70:71]\ns_mov_b32 m0, s72\ns_waitcnt lgkmcnt(0)\nv_writelane_b32 v255, s70, m0\ns_add_u32 s8, s30, {200<<20}\ns_addc_u32 s9, s31, 0\ns_mov_b32 s10, 65536\ns_lshl_b32 s50, s2, 8\nv_lshl_add_u32 v13, v0, 2, s50\nv_cmp_gt_u32 vcc, 64, v0\ns_and_saveexec_b64 s[50:51], vcc\nbuffer_store_dword v255, v13, s[8:11], 0 offen")
A("L_end:\ns_endpgm")
A(f"""L_spin:
s_mov_b32 s52, 30000
L_spin1:
buffer_load_dwordx2 v[150:151], v149, s[32:35], 0 offen offset:{FLAG_OFF} sc1
s_sub_u32 s52, s52, 1
s_cbranch_scc1 L_spin_ret
s_waitcnt vmcnt(0)
v_cmp_eq_u32 vcc, {sNA}, v150
v_cmp_eq_u32 s[50:51], {sNB}, v151
s_and_b64 vcc, vcc, s[50:51]
s_cmp_eq_u64 vcc, -1
s_cbranch_scc0 L_spin1
s_branch L_spin_ret
L_codeend:""")
A(f""".section .rodata,"a"
.p2align 6
.amdhsa_kernel {KN}
.amdhsa_next_free_vgpr 512
.amdhsa_next_free_sgpr 102
.amdhsa_accum_offset 256
.amdhsa_group_segment_fixed_size 0
.amdhsa_kernarg_size 64
.amdhsa_user_sgpr_count 2
.amdhsa_user_sgpr_kernarg_segment_ptr 1
.amdhsa_system_sgpr_workgroup_id_x 1
.end_amdhsa_kernel""")
print("\n".join(o))
```

```python
import sys, re
OPT = dict(a.split("=") if "=" in a else (a, "1") for a in sys.argv[1:])
STAMP = int(OPT.get("stamp", 0))
PROF = int(OPT.get("prof", 0))
KN = "standalone__self_sup_conv_stem_hubert__speech_kernel"
o = []
def A(s):
    for l in s.split("\n"):
        l = l.strip()
        if l: o.append(l if l.endswith(":") or l.startswith((".", ";")) else "    " + l)

XS = [0, 17408]; OOFF = 8704; CL = 1088
SS = [34816, 43520]
STG = 65536
RB0 = 100352
R15 = 52224
PAIR = 65536
ROT = int(OPT.get('rot', 0))
LDS = RB0 + 4*15360
WSTREAM = 393216
MISC = 8 << 20
FLAG_OFF = 0; STAT_OFF = 1 << 20; EPOCH_OFF = 2 << 20
ACC = {"a": 16, "b": 48, "c": 80}
def acc(p, j): r = ACC[p] + 4*j; return f"v[{r}:{r+3}]"
XSET = {"a": 0, "b": 60, "c": 120}
def xf(p, s): r = XSET[p] + 4*s; return f"a[{r}:{r+3}]"
def bf(p, q):
    if p == "c": r = 112 + 4*q; return f"v[{r}:{r+3}]"
    r = {"a": 180, "b": 212}[p] + 4*q; return f"a[{r}:{r+3}]"
vLane, vL16, vR0, vR1, vSO, vSE1, vT = "v1", "v2", "v3", "v4", "v5", "v6", "v7"
vX = ["v8", "v9", "v10", "v11", "v12"]
vR0x, vR1x, vSOx, vTx = "v184", "v185", "v186", "v187"
sXo1 = "s60"
vG = 144
T0 = 152
sB, sN, sM, sW, sNu = "s36", "s37", "s38", "s39", "s40"
sNA, sNB, sE = "s41", "s42", "s43"
sWo, sXo, sCnt, sM0 = "s44", "s45", "s46", "s47"
sTmp = [f"s{i}" for i in range(48, 60)]
nstamp = [0]
def stamp():
    if STAMP:
        k = nstamp[0]; nstamp[0] += 1
        A(f"s_memrealtime s[70:71]\ns_memtime s[72:73]\ns_waitcnt lgkmcnt(0)\ns_mov_b32 s{74+2*k}, s70\ns_mov_b32 s{75+2*k}, s72")
RA_, RB_ = 188, 220
vWr, vTr0, vTr15 = "v252", "v253", "v254"
sRB, sR15 = "s62", "s63"
def sT(q): return "0" if q == 0 else ["s64", "s65", "s66", "s67", "s68", "s69", "s61"][q-1]
MAP = int(OPT.get("map", 1))
if MAP == 0: MAPC = f"s_bfe_u32 {sN}, s2, 0x20001\ns_lshr_b32 {sM}, s2, 3"
elif MAP == 1: MAPC = f"s_bfe_u32 {sN}, s2, 0x20003\ns_bfe_u32 {sM}, s2, 0x20001\ns_lshr_b32 s48, s2, 5\ns_lshl_b32 {sM}, {sM}, 3\ns_add_u32 {sM}, {sM}, s48"
else: MAPC = f"s_bfe_u32 {sN}, s2, 0x10001\ns_bfe_u32 s48, s2, 0x10003\ns_lshl_b32 {sN}, {sN}, 1\ns_add_u32 {sN}, {sN}, s48\ns_bfe_u32 {sM}, s2, 0x10002\ns_lshl_b32 {sM}, {sM}, 4\ns_lshr_b32 s48, s2, 4\ns_add_u32 {sM}, {sM}, s48"
hdr = open("standalone__self_sup_conv_stem_hubert__speech.s.ref").read().split("; Override launch")[0]
for l in hdr.strip().split("\n"): o.append(l)
A(f"; @launch grid=(256,1,1) block=(256,1,1) lds={LDS}")
A(f'.amdgcn_target "amdgcn-amd-amdhsa--gfx950"\n.text\n.globl {KN}\n.p2align 8\n.type {KN},@function\n{KN}:')
A("s_cmp_ge_u32 s2, 256\ns_cbranch_scc1 L_end")
A("s_load_dwordx16 s[16:31], s[0:1], 0")
if OPT.get("pst"): A("s_memrealtime s[74:75]\ns_memtime s[72:73]"); nstamp[0] += 1
else: stamp()
A(f"""v_lshrrev_b32 v13, 6, v0
v_and_b32 {vLane}, 63, v0
s_and_b32 {sB}, s2, 1
v_readfirstlane_b32 {sW}, v13
{MAPC}
v_lshlrev_b32 {vL16}, 4, {vLane}
s_lshl_b32 {sNu}, {sN}, 2
s_add_u32 {sNu}, {sNu}, {sW}""")
A(f"""v_lshrrev_b32 v13, 3, v0
v_bfe_u32 v14, v0, 4, 1
v_bfe_u32 v15, v0, 6, 1
v_lshl_add_u32 v14, v15, 1, v14
v_bfe_u32 v15, v0, 1, 2
v_xor_b32 v14, v14, v15
v_lshlrev_b32 v14, 5, v14
v_lshl_add_u32 v14, v13, 9, v14
v_and_b32 v15, 1, v0
v_lshl_add_u32 v14, v15, 4, v14
s_lshl_b32 s48, {sN}, 7
v_add_u32 v14, s48, v14
s_lshl_b32 s48, {sNu}, 5""")
A(f"""s_lshr_b32 s50, {sM}, 1
s_and_b32 s51, {sM}, 1
s_lshl_b32 s51, s51, 1
s_add_u32 s51, s51, {sB}
s_and_b32 s52, s50, 1
s_lshl_b32 s49, s51, 3
s_add_u32 s49, s49, s52
s_lshl_b32 s49, s49, 17
s_lshr_b32 s52, s50, 1
s_lshl_b32 s52, s52, 14
s_add_u32 s49, s49, s52
s_mul_i32 s53, s50, 24576
s_lshl_b32 s52, s51, 11
s_add_u32 s53, s53, s52
s_lshl_b32 {sM0}, {sW}, 10
s_mov_b32 s10, 4063232
s_mov_b32 s11, 0x20000
s_mov_b32 s6, 16384000
s_mov_b32 s7, 0x20000
s_mul_i32 s55, {sM}, {255*2*512}
s_mul_i32 s56, {sB}, 8192000
s_add_u32 s55, s55, s56
s_lshl_b32 s56, {sW}, 4
s_movk_i32 s57, 241""")
def xaddr(dst, Rv, gv, sh):
    A(f"""v_cmp_le_u32 vcc, 136, {Rv}
v_subrev_u32 v15, 136, {Rv}
s_nop 0
v_cndmask_b32 {Rv}, {Rv}, v15, vcc
v_cndmask_b32 v150, 0, 2, vcc
v_mul_u32_u24 v15, s57, {Rv}
v_lshrrev_b32 v15, 12, v15
v_mul_u32_u24 v151, 17, v15
v_sub_u32 {Rv}, {Rv}, v151
v_lshl_add_u32 v15, {Rv}, 3, v15
v_lshl_add_u32 v15, v15, 2, v150
v_lshlrev_b32 v15, 9, v15
v_lshrrev_b32 {Rv}, 1, {Rv}
v_and_b32 {Rv}, 2, {Rv}
v_xor_b32 {Rv}, {Rv}, {gv}
v_lshl_add_u32 v15, {Rv}, 4, v15
v_add_u32 {dst}, s55, v15""")
A(f"v_lshrrev_b32 v152, 2, {vLane}\nv_add_u32 v152, s56, v152\nv_and_b32 v153, 3, {vLane}")
for k in range(4):
    A(f"v_add_u32 v13, {64*k}, v152")
    xaddr(vX[k], "v13", "v153", 0)
A(f"s_lshl_b32 s56, {sW}, 2\ns_add_u32 s56, s56, 256\nv_lshrrev_b32 v13, 4, {vLane}\nv_add_u32 v13, s56, v13\nv_bfe_u32 v153, {vLane}, 2, 2")
xaddr(vX[4], "v13", "v153", 0)
A(f"v_and_b32 v13, 3, {vLane}\nv_lshl_add_u32 {vX[4]}, v13, 2, {vX[4]}")
A(f"s_lshl_b32 s58, {sW}, 8\ns_add_u32 s58, s58, 16384\ns_mov_b32 {sXo}, 0\ns_movk_i32 {sXo1}, 512")
A(f"s_add_u32 {sRB}, {sM0}, {RB0}\ns_add_u32 {sR15}, {sM0}, {R15}\ns_add_u32 m0, {sM0}, {STG}")
for q in range(1, 8): A(f"s_mov_b32 {sT(q)}, {q*524288}")
A(f"""v_mov_b32 {vWr}, v14
s_lshl_b32 s52, {sN}, 8
s_add_u32 s52, s52, {EPOCH_OFF}
s_waitcnt lgkmcnt(0)
s_mov_b32 s8, s18
s_mov_b32 s9, s19
s_mov_b32 s4, s16
s_mov_b32 s5, s17""")
if OPT.get("pst"): A("s_mov_b32 s75, s72"); stamp()
for k in range(4):
    A(f"buffer_load_dwordx4 v14, s[8:11], s49 offen lds")
    if k < 3: A(f"s_add_u32 m0, m0, 4096\ns_add_u32 s49, s49, 262144")
A(f"s_add_u32 s32, s30, {MISC}\ns_addc_u32 s33, s31, 0\ns_load_dword {sE}, s[32:33], s52")
def xdma_list(slot, soff):
    L = []
    for k in range(4):
        L.append([f"s_add_u32 m0, {sM0}, {XS[slot] + 4096*k}", f"buffer_load_dwordx4 {vX[k]}, s[4:7], {soff} offen lds"])
    L.append([f"s_add_u32 m0, s58, {XS[slot]}", f"buffer_load_dword {vX[4]}, s[4:7], {soff} offen lds"])
    return L
for m0, ld in xdma_list(0, sXo): A(m0 + "\ns_nop 0\n" + ld)
def wdma(slot, q): return [f"s_add_u32 m0, {sRB}, {slot*4096}" if slot < 15 else f"s_mov_b32 m0, {sR15}", f"buffer_load_dwordx4 {vWr}, s[8:11], {sT(q)} offen lds"]
for q in range(8): m0, ld = wdma(q, q); A(m0 + "\ns_nop 0\n" + ld)
if OPT.get("pst"): stamp()
NWARM = int(OPT.get("warm", 2))
A(f"v_add_u32 {vWr}, {2*131072}, v14")
A(f"""v_and_b32 v13, 15, {vLane}
v_lshrrev_b32 v15, 4, {vLane}
v_lshrrev_b32 v150, 1, v13
v_and_b32 v150, 2, v150
v_xor_b32 v150, v150, v15
v_lshlrev_b32 v150, 4, v150
v_lshl_add_u32 {vR0}, v13, 6, v150
v_add_u32 v13, 1, v13
v_lshrrev_b32 v150, 1, v13
v_and_b32 v150, 2, v150
v_xor_b32 v150, v150, v15
v_lshlrev_b32 v150, 4, v150
v_lshl_add_u32 {vR1}, v13, 6, v150
s_mul_i32 s52, {sW}, {2*CL}
v_add_u32 {vSO}, s52, {vL16}
v_add_u32 {vSE1}, {2*CL}, {vSO}
v_lshrrev_b32 v13, 2, {vLane}
v_add_u32 v15, 1, v13
v_xor_b32 v13, v13, v15
v_lshrrev_b32 v13, 1, v13
v_and_b32 v13, 2, v13
v_and_b32 v150, 3, {vLane}
v_xor_b32 v13, v13, v150
v_lshlrev_b32 v13, 4, v13
v_lshl_add_u32 v13, v15, 6, v13
s_cmp_eq_u32 {sW}, 3
s_cselect_b64 vcc, -1, 0
v_cndmask_b32 {vSE1}, {vSE1}, v13, vcc
v_bfe_u32 v13, {vLane}, 4, 1
v_mul_u32_u24 v13, {CL}, v13
v_and_b32 v15, 15, {vLane}
v_lshl_add_u32 v13, v15, 2, v13
s_add_u32 s52, s52, 1024
v_add_u32 {vT}, s52, v13
v_mov_b32 {vR0x}, {vR0}
v_mov_b32 {vR1x}, {vR1}
v_mov_b32 {vSOx}, {vSO}
v_mov_b32 {vTx}, {vT}""")
A(f"""v_bfe_u32 v13, {vLane}, 3, 2
v_xor_b32 v13, {sW}, v13
v_lshlrev_b32 v13, 5, v13
v_and_b32 v15, 3, {vLane}
v_lshl_add_u32 v13, v15, 3, v13
v_bfe_u32 v15, {vLane}, 2, 2
v_lshl_add_u32 v13, v15, 7, v13
v_lshrrev_b32 v15, 4, {vLane}
v_lshl_add_u32 v13, v15, 10, v13
v_add_u32 {vTr0}, {RB0}, v13
v_add_u32 {vTr15}, {R15}, v13
v_add_u32 v14, {STG}, v13""")
A(f"""s_mul_i32 s52, {sNu}, {WSTREAM}
s_add_u32 s12, s30, s52
s_addc_u32 s13, s31, 0
s_mov_b32 s14, {WSTREAM}
s_mov_b32 s15, 0x20000
s_mov_b32 s34, {4<<20}
s_mov_b32 s35, 0x20000""")
if OPT.get("pst"): stamp()
A(f"s_waitcnt vmcnt(13)\ns_barrier")
stamp()
for k in range(4):
    A(f"ds_read_b64_tr_b16 v[{T0+4*k}:{T0+4*k+1}], v14 offset:{4096*k}\nds_read_b64_tr_b16 v[{T0+4*k+2}:{T0+4*k+3}], v14 offset:{4096*k+512}")
def addpair(d, x, y, t):
    return [f"v_lshlrev_b32 v{t}, 16, v{x}", f"v_lshlrev_b32 v{t+1}, 16, v{y}", f"v_and_b32 v{t+2}, 0xffff0000, v{x}",
            f"v_and_b32 v{t+3}, 0xffff0000, v{y}", f"v_add_f32 v{t}, v{t}, v{t+1}", f"v_add_f32 v{t+2}, v{t+2}, v{t+3}",
            f"v_cvt_pk_bf16_f32 v{d}, v{t}, v{t+2}"]
A(f"s_add_u32 s50, s53, 8192\ns_add_u32 s51, s53, 16384\ns_waitcnt lgkmcnt(0)")
A(f"s_add_u32 {sNA}, {sE}, 1\ns_mul_i32 {sNB}, {sE}, 0x9E3779B1\ns_add_u32 {sNB}, {sNB}, 0x7F4A7C15")
A(f"""buffer_store_dwordx4 v[{T0}:{T0+3}], {vL16}, s[12:15], s53 offen sc1
buffer_store_dwordx4 v[{T0+8}:{T0+11}], {vL16}, s[12:15], s53 offen offset:1024 sc1
buffer_store_dwordx4 v[{T0+4}:{T0+7}], {vL16}, s[12:15], s50 offen sc1
buffer_store_dwordx4 v[{T0+12}:{T0+15}], {vL16}, s[12:15], s50 offen offset:1024 sc1""")
for h in range(2):
    for d in range(4):
        for x in addpair(T0+16+4*h+d, T0+8*h+d, T0+8*h+4+d, T0+24): A(x)
    A(f"buffer_store_dwordx4 v[{T0+16+4*h}:{T0+19+4*h}], {vL16}, s[12:15], s51 offen offset:{1024*h} sc1")
for q in range(8): m0, ld = wdma(8 + q, q); A(m0 + "\ns_nop 0\n" + ld)
for m0, ld in xdma_list(1, sXo1): A(m0 + "\ns_nop 0\n" + ld)
A(f"""v_lshrrev_b32 v13, 4, {vLane}
v_lshlrev_b32 v13, 3, v13
v_and_b32 v15, 3, {vLane}
v_lshl_add_u32 v13, v15, 1, v13
v_add_u32 v13, s48, v13
global_load_ushort v{vG}, v13, s[22:23]
global_load_ushort v{vG+1}, v13, s[24:25]
global_load_ushort v{vG+2}, v13, s[20:21]""")
if NWARM >= 1:
    A(f"""s_and_b32 s50, {sM}, 7
s_lshl_b32 s50, s50, 2
s_add_u32 s50, s50, {sW}
s_lshr_b32 s51, s50, 1
s_lshl_b32 s51, s51, 18
s_and_b32 s50, s50, 1
s_lshl_b32 s50, s50, 13
s_add_u32 s50, s50, s51
s_lshl_b32 s51, {sN}, 7
s_add_u32 s50, s50, s51
s_add_u32 s50, s50, 131072
v_and_b32 v13, 15, {vLane}
v_lshlrev_b32 v13, 9, v13
buffer_load_dword v147, v13, s[8:11], s50 offen""")
if NWARM >= 2:
    A(f"""s_getpc_b64 s[96:97]
L_pc:
s_mov_b32 s98, L_codeend - L_pc
s_mov_b32 s99, 0x20000
s_lshr_b32 s50, s2, 3
s_and_b32 s50, s50, 7
s_lshl_b32 s50, s50, 2
s_add_u32 s50, s50, {sW}
s_lshl_b32 s50, s50, 10
v_and_b32 v13, 7, {vLane}
v_lshlrev_b32 v13, 7, v13
buffer_load_dword v147, v13, s[96:99], s50 offen""")
if OPT.get("pst"): stamp()
A(f"""v_subrev_u32 {vWr}, 131072, {vWr}
s_xor_b32 {sM0}, {sM0}, {PAIR}
s_xor_b32 s58, s58, {PAIR}
s_add_u32 {sXo}, {sXo}, 64
s_add_u32 {sXo1}, {sXo}, 512""")
A(f"""s_lshl_b32 s52, {sM}, 1
s_add_u32 s52, s52, {sB}
s_lshl_b32 s52, s52, 3
s_lshl_b32 s53, {sN}, 9
s_add_u32 s52, s52, s53
v_mov_b32 v150, {sNA}
v_mov_b32 v151, {sNB}
v_mov_b32 v148, s52
v_cmp_eq_u32 s[56:57], 0, v0
v_lshl_add_u32 v149, {vLane}, 3, s53
s_waitcnt vmcnt({22 + NWARM})
s_barrier""")
stamp()
def trrd(dst, slot):
    v, off = (vTr0, slot*4096) if slot < 15 else (vTr15, 0)
    return [f"ds_read_b64_tr_b16 v[{dst}:{dst+1}], {v} offset:{off}", f"ds_read_b64_tr_b16 v[{dst+2}:{dst+3}], {v} offset:{off+512}"]
SA, SBr, SD, ST = 160, 164, 168, 172
RA, RB, RD, RT = 176, 177, 178, 180
def s_piece(e, xs, ss):
    rd = [f"ds_read_b128 v[{SA}:{SA+3}], {vSOx} offset:{XS[xs] + OOFF + e*CL}",
          f"ds_read_b128 v[{SBr}:{SBr+3}], {vSOx if e == 0 else vSE1} offset:{XS[xs] + (CL if e == 0 else 0)}"]
    va = []
    for d in range(4): va += addpair(SD+d, SA+d, SBr+d, ST)
    wr = [f"ds_write_b128 {vSO}, v[{SD}:{SD+3}] offset:{SS[ss] + e*CL}"]
    return rd, va, wr
def r_piece(xs, ss):
    rd = [f"ds_read_b32 v{RA}, {vTx} offset:{XS[xs] + OOFF}", f"ds_read_b32 v{RB}, {vTx} offset:{XS[xs] + CL}"]
    return rd, addpair(RD, RA, RB, RT), [f"ds_write_b32 {vT}, v{RD} offset:{SS[ss]}"]
def frag_reads(p, base):
    r0, r1 = (vR0, vR1) if p == "c" else (vR0x, vR1x)
    return [f"ds_read_b128 {xf(p, s)}, {r0 if s < 8 else r1} offset:{base + (s & 7)*CL}" for s in range(15)]
rd, va, wr = s_piece(0, 0, 0); rd2, va2, wr2 = r_piece(0, 0)
for x in rd + rd2: A(x)
fr = frag_reads("a", XS[0])
pre = []
for q in range(8): pre += trrd(RA_ + 4*q, q) + fr[2*q:2*q+2]
for x in pre[:10]: A(x)
A("s_waitcnt lgkmcnt(10)")
rest = pre[10:]
for x in va + wr + va2 + wr2:
    A(x)
    if rest: A(rest.pop(0))
assert not rest
PR = ["a", "b", "c", "a", "b", "c"]; NQ = [8, 8, 8, 8, 7, 8]
BM = OPT.get("bmode", "sc1")
def bload(k, q):
    so = sWo if BM != "l1" else "0"
    return f"buffer_load_dwordx4 {bf(PR[k % 6], q)}, {vL16}, s[12:15], {so} offen offset:{1024*(q & 3)} {dict(sc1='sc1', plain='', l1='', nt='nt', sc1nt='sc1 nt')[BM]}"
SADD = f"s_add_u32 {sWo}, {sWo}, 4096"
NX = [int(c) for c in OPT.get("nx", "221")]
def layout(k):
    p = PR[k]; par = k // 3; t = par; n = 8 * NQ[k]
    fill = [[] for _ in range(64)]
    bs = [1, 9, 17, 24, 33, 40, 49, 56] if n == 64 else [1, 9, 17, 24, 33, 40, 49, 53]
    seq = [(k+2, 6), (k+2, 7)] + [(k+3, q) for q in range(6)]
    for sl, (kk, q) in zip(bs, seq):
        if q < NQ[kk % 6]: fill[sl].append((bload(kk, q), ("B", kk % 6, q)))
    adds = [(bs[1] + 1, [SADD]), (bs[5] + 1, [SADD])]
    if k == 3 and ROT:
        adds[0] = (bs[1] + 1, [SADD, f"s_cmp_eq_u32 {sWo}, {WSTREAM}"])
        adds += [(bs[1] + 2, [f"s_cselect_b32 {sWo}, 0, {sWo}", f"s_cmp_eq_u32 {sCnt}, 1"]), (bs[1] + 3, [f"s_cselect_b32 {sWo}, s59, {sWo}"])]
    for sl, L in adds: fill[sl] += [(x, None) for x in L]
    xl = xdma_list(par, sXo if par == 0 else sXo1)
    x0 = sum(NX[:k % 3]); xs = [13, 29, 45][:NX[k % 3]] if NX[k % 3] > 1 else [13]
    for j in range(NX[k % 3]):
        fill[xs[j] - 1].append((xl[x0 + j][0], None)); fill[xs[j]].append((xl[x0 + j][1], ("X", par, x0 + j)))
    for q2 in range(1, 4): fill[16*q2 - 1].append((("VW", ("B", k, min(2*q2 + 1, NQ[k] - 1))), None))
    if p == "a": piece = s_piece(1, t, t); R = frag_reads("b", XS[t] + OOFF)
    elif p == "b": piece = r_piece(1-t, 1-t); R = frag_reads("c", SS[t])
    else: piece = s_piece(0, 1-t, 1-t); R = frag_reads("a", XS[1-t])
    rd, va, wr = piece
    misc = []
    if k == 0: misc = [[f"s_cmp_eq_u32 {sCnt}, 1", "s_cselect_b32 s6, 0, s6"]]
    seq = misc + [rd[0], rd[1], R[0], R[1], R[2], R[3], ("LW", rd[1])]
    v = list(va); rr = R[4:]
    per = 3 if p != "b" else 1
    while rr:
        for _ in range(per):
            if v: seq.append(v.pop(0))
        seq.append(rr.pop(0))
    seq += v + wr
    if k == 3: seq += [[f"v_xor_b32 {x}, {PAIR}, {x}"] for x in (vR0x, vR1x, vSOx, vSE1, vTx)]
    if k == 5: seq += [[f"s_xor_b32 {sM0}, {sM0}, {PAIR}", f"s_xor_b32 s58, s58, {PAIR}"], [f"s_add_u32 {sXo}, {sXo}, {0 if OPT.get('xfix') else 64}", f"s_and_b32 {sXo}, {sXo}, 0x1ff"],
                       [f"s_add_u32 {sXo1}, {sXo}, 512", f"s_sub_u32 {sCnt}, {sCnt}, 1"], f"s_cmp_lg_u32 {sCnt}, 0"]
    free = [i for i in range(n - 1) if not fill[i]]
    shared = [i for i in range(n - 1) if len(fill[i]) == 1 and fill[i][0][1] is None]
    lim = n - 7
    need = len(seq) - (5 if k == 3 else 4 if k == 5 else 0)
    sl = [i for i in free if i <= lim]
    sh = [i for i in shared if i <= lim]
    dup = [i for i in free if 18 <= i <= lim][::5]
    while len(sl) < need:
        if sh: sl.append(sh.pop(0))
        else: sl.append(dup.pop(0))
    sl = sorted(sl)[:need] if len(sl) == need else sorted(sl)
    if len(sl) > need:
        sl = [sl[round(i * (len(sl) - 1) / (need - 1))] for i in range(need)] if OPT.get("spread", "1") == "1" else sl[:need]
    tail = [i for i in range(sl[-1] + 1, n) if not fill[i] or (len(fill[i]) == 1 and fill[i][0][1] is None)]
    sl += tail
    assert len(sl) >= len(seq), (k, len(sl), len(seq))
    for i, it in zip(sl, seq):
        for x in (it if isinstance(it, list) else [it]): fill[i].append((x, None))
    return fill
fills = [layout(k) for k in range(6)]
starts = []
for k in range(6):
    m = [("B", k, 1)]
    if PR[k] == "b": m.append(("X", 1 - k // 3, 4))
    starts.append(m)
flat = []
for k in range(6):
    flat.append((k, -1, ("VS", starts[k]), None))
    for i in range(64):
        for (x, tag) in fills[k][i]: flat.append((k, i, x, tag))
def vcount(idx, marker):
    n = 0
    for d in range(1, len(flat)):
        tag = flat[idx - d][3]
        if tag == marker: return n
        if tag is not None: n += 1
    assert False
res = {}
for idx, (k, i, x, tag) in enumerate(flat):
    if isinstance(x, tuple):
        if x[0] == "VS": y = f"s_waitcnt vmcnt({min(vcount(idx, m) for m in x[1])}) lgkmcnt(0)"
        elif x[0] == "VW": y = f"s_waitcnt vmcnt({vcount(idx, x[1])})"
        else:
            n = 0; d = 1
            while flat[idx - d][2] != x[1]:
                if isinstance(flat[idx - d][2], str) and flat[idx - d][2].startswith("ds_"): n += 1
                d += 1
            y = f"s_waitcnt lgkmcnt({n})"
    else: y = x
    res.setdefault((k, i), []).append(y)
def product(p, par, fill, nq, bfn=None, zero=False):
    bfn = bfn or bf
    i = 0
    if PROF == 1:
        fill[52].append("s_memtime s[70:71]")
        fill[4].append("s_mov_b32 m0, s72"); fill[6].append("v_writelane_b32 v255, s70, m0"); fill[7].append("s_add_u32 s72, s72, 1")
    for q2 in range(4):
        for j in range(8):
            for q in (2*q2, 2*q2+1):
                if q >= nq: continue
                A(f"v_mfma_f32_16x16x32_bf16 {acc(p, j)}, {bfn(p, q)}, {xf(p, j+q)}, {0 if zero and q == 0 else acc(p, j)}")
                for x in fill[i]:
                    ab = OPT.get("abl", "")
                    if "V" in ab and x.startswith("v_") and "xor" not in x and "writelane" not in x: continue
                    if "B" in ab and x.startswith("buffer_load") and "lds" not in x: continue
                    if "X" in ab and x.startswith("buffer_load") and "lds" in x: continue
                    if "R" in ab and x.startswith("ds_read_b128 a"): continue
                    if "S" in ab and (x.startswith("ds_write") or x.startswith("ds_read_b128 v") or x.startswith("ds_read_b32")): continue
                    A(x)
                i += 1
    assert all(not f for f in fill[i:]), (p, par)
def place(fill, items, slots):
    assert len(items) <= len(slots), (len(items), len(slots))
    for it, s in zip(items, slots): fill[s] += it if isinstance(it, list) else [it]


G0 = [0, 64, 128, 192, 256, 312, 376]
items = []
def item(text, e, d, preds=(), cost=None, tag=None, lw=None, vw=None):
    t = text if isinstance(text, list) else [text]
    c = cost if cost is not None else len(t) + (lw is not None) + (vw is not None)
    items.append(dict(t=t, e=e, d=d, preds=list(preds), cost=c, tag=tag, lw=lw, vw=vw, g=None)); return len(items) - 1
def chain(L, e, d, first_preds=(), lw=None, vw=None):
    ids = []
    for i, x in enumerate(L):
        ids.append(item(x, e, d, (list(first_preds) if i == 0 else [(ids[-1], 0)]), lw=lw if i == 0 else None, vw=vw if i == 0 else None))
    return ids
def fixed(text, g, tag=None, cost=None, vw=None): return item(text, g, g, cost=cost, tag=tag, vw=vw)
def fdma(pair, g, tag): fixed(pair[0], g - 1); fixed(pair[1], g, tag=tag, cost=2)
GB1 = int(OPT.get("gb1", 8)); GB3 = int(OPT.get("gb3", 150))
fixed("s_barrier", GB1, vw=("Wb0", 7)); fixed("s_barrier", 127, vw=("Wa1", 7)); fixed("s_barrier", GB3, vw=("Wb1", 6))
for q in range(8): fdma(wdma(q, q), GB1 + 3 + 5*q, ("Wa1", q))
x2 = xdma_list(0, sXo); x3 = xdma_list(1, sXo1)
for j, g in enumerate([52, 58, 112, 120, 136]): fdma(x2[j], g, ("X2", j))
fixed(f"v_add_u32 {vWr}, {2*131072}, {vWr}", 62)
fixed(["s_mov_b64 exec, s[56:57]", f"buffer_store_dwordx2 v[150:151], v148, s[32:35], 0 offen offset:{FLAG_OFF} sc1", "s_mov_b64 exec, -1"], 64, tag=("F", 0))
for q in range(7): fdma(wdma(8 + q, q), 68 + 6*q, ("Wb1", q))
fdma(x3[0], 200, ("X", 1, 0))
PG = int(OPT.get("pollg", 230))
fixed(f"buffer_load_dwordx2 v[150:151], v149, s[32:35], 0 offen offset:{FLAG_OFF} sc1", PG, tag=("P", 0), cost=2)
fixed(f"v_cmp_eq_u32 vcc, {sNA}, v150", 251, vw=("P", 0)); fixed(f"v_cmp_eq_u32 s[50:51], {sNB}, v151", 252)
fixed(["s_and_b64 vcc, vcc, s[50:51]", "s_cmp_eq_u64 vcc, -1"], 253); fixed(["s_cbranch_scc0 L_spin", "L_spin_ret:"], 254, cost=1)
for j, x in enumerate((vR0x, vR1x, vSOx, vSE1, vTx)): fixed(f"v_xor_b32 {x}, {PAIR}, {x}", 250 + j)
emu = []; started = False
for (k, i, x, tag) in flat:
    if k < 3: continue
    if tag and tag[0] == "B" and tag[1] == 0: started = True
    if not started: continue
    if tag or x == SADD: emu.append((x, tag))
nv = sum(1 for x, tag in emu if tag) - 6
gs = [257 + round(j * 68 / (nv - 1)) for j in range(nv)] + [312 + z for z in (17, 24, 33, 40, 49, 56)]
j = 0
for x, tag in emu:
    if tag is None: fixed(x, gs[j-1] + 1)
    elif tag[0] == "B": fixed(x, gs[j], tag=tag, cost=2); j += 1
    else: fdma(x3[tag[2]], gs[j], tag); j += 1
for j, L in enumerate([[f"s_xor_b32 {sM0}, {sM0}, {PAIR}", f"s_xor_b32 s58, s58, {PAIR}"], [f"s_add_u32 {sXo}, {sXo}, 64", f"s_add_u32 {sXo1}, {sXo1}, 64"]]): fixed(L, 372 + j)
def piece_chain(piece, e, d, preds=()):
    rd, va, wr = piece
    r = chain(rd, e, d, preds)
    return chain(va + wr, e, d, [(r[-1], 6)], lw=r[-1])
chain(frag_reads("b", XS[0] + OOFF), 0, 56)
sp = piece_chain(s_piece(1, 0, 0), 0, 57)
sp = piece_chain(s_piece(0, 1, 1), 64, 240, [(sp[-1], 0)])
sp = piece_chain(s_piece(1, 1, 1), 64, 248, [(sp[-1], 0)])
sp = piece_chain(s_piece(0, 0, 0), 256, 369, [(sp[-1], 0)])
piece_chain(r_piece(1, 1), 64, 240); piece_chain(r_piece(0, 0), 256, 369)
chain(frag_reads("c", SS[0]), 64, 120); chain(frag_reads("a", XS[1]), 64, 184)
chain(frag_reads("b", XS[1] + OOFF), 128, 248); chain(frag_reads("c", SS[1]), 256, 304); chain(frag_reads("a", XS[0]), 256, 368)
FT = 152
prev = None; tb = []; fs0 = []
for q in range(8):
    tb.append(chain(trrd(RB_ + 4*q, 8 + q), GB1 + 1, 56, [(tb[-1][-1], 0)] if q else []))
for q in range(8):
    va = sum((addpair(112 + 4*q + d, RA_ + 4*q + d, RB_ + 4*q + d, FT) for d in range(4)), [])
    fs0.append(chain(va, 0, 128 + 16*(q >> 1) - 3, [(tb[q][-1], 6)] + ([(fs0[-1][-1], 0)] if q else []), lw=tb[q][-1]))
ta = []; tb1 = []
for q in range(8):
    ta.append(chain(trrd(RA_ + 4*q, q), 128, 184, [(fs0[q][-1], 0)] + ([(ta[-1][-1], 0)] if q else [])))
for q in range(7):
    tb1.append(chain(trrd(RB_ + 4*q, 8 + q), GB3 + 1, 248, [(fs0[q][-1], 0)] + ([(tb1[-1][-1], 0)] if q else [])))
last = fs0[-1][-1]
for q in range(7):
    va = sum((addpair(112 + 4*q + d, RA_ + 4*q + d, RB_ + 4*q + d, FT) for d in range(4)), [])
    c = chain(va, 128 + 16*((q >> 1) + 1), 312 + 16*(q >> 1) - 3, [(tb1[q][-1], 6), (ta[q][-1], 6), (last, 0)], lw=[tb1[q][-1], ta[q][-1]]); last = c[-1]
chain(trrd(112 + 28, 7), 192, 248, [(ta[7][-1], 0)])
for i in reversed(range(len(items))):
    for (p, dist) in items[i]["preds"]:
        items[p]["d"] = min(items[p]["d"], items[i]["d"] - max(dist, 0.5))
fillR = [[] for _ in range(376)]
load = [0] * 376
for it in items:
    if it["e"] == it["d"] and not it["preds"]: it["g"] = it["e"]; load[it["e"]] += it["cost"]; fillR[it["e"]].append(it)
CAP = 2
for g in range(376):
    while True:
        ready = [it for it in items if it["g"] is None and it["e"] <= g and all(items[p]["g"] is not None and items[p]["g"] + dist <= g for p, dist in it["preds"])]
        if not ready: break
        it = min(ready, key=lambda z: z["d"])
        if load[g] + 1 > CAP and it["d"] > g: break
        it["g"] = g; load[g] += it["cost"]; fillR[g].append(it)
assert all(it["g"] is not None for it in items)
late = [(it["t"][0], it["g"], it["d"]) for it in items if it["g"] > it["d"] + 0.6]
assert not late, late
sys.stderr.write("R overflow slots: %d, loads: %s\n" % (sum(max(0, l - 2) for l in load), "".join(str(min(l, 9)) for l in load)))
hist = [("P", 9)]*4 + [("X0", 0)]*5 + [("Wa0", q) for q in range(8)] + [("ST", q) for q in range(6)] + [("Wb0", q) for q in range(8)] + [("X1", 0)]*5 + [("G", 0)]*(3 + NWARM)
ldsq = []
def vw(marker):
    k = len(hist) - 1 - hist[::-1].index(marker); return len(hist) - 1 - k
outR = [[] for _ in range(376)]
bstart = {}
for g in range(376):
    if g in G0:
        k = G0.index(g)
        m = {1: ("X1", 0), 4: ("X2", 4)}.get(k)
        bstart[k] = f"s_waitcnt vmcnt({vw(m)}) lgkmcnt(0)" if m else "s_waitcnt lgkmcnt(0)"
    for it in fillR[g]:
        if it["lw"] is not None:
            srcs = [items[z] for z in (it["lw"] if isinstance(it["lw"], list) else [it["lw"]])]
            ns = [ldsq[::-1].index(id(src)) for src in srcs if src["g"] >= max(z for z in G0 if z <= g)]
            if ns: outR[g].append(f"s_waitcnt lgkmcnt({min(min(ns), 15)})")
        if it["vw"] is not None: outR[g].append(f"s_waitcnt vmcnt({vw(it['vw'])})")
        for x in it["t"]:
            outR[g].append(x)
            if x.startswith("ds_"): ldsq.append(id(it))
        if it["tag"]: hist.append(it["tag"])
if PROF == 2:
    for k in range(14): outR[27*k + 1].append(f"s_memtime s[{74+2*k}:{75+2*k}]")
A(f"s_mov_b32 {sWo}, 49152\ns_mov_b32 {sCnt}, 7")
if PROF: A("s_memtime s[70:71]\ns_mov_b32 s72, 0\nv_mov_b32 v255, 0")
def bfR(p, q):
    if p == "c": return bf(p, q)
    r = {"a": RA_, "b": RB_}[p] + 4*q; return f"v[{r}:{r+3}]"
for k in range(6):
    A(bstart[k])
    if k == 0: stamp()
    if PR[k] == "b": A("s_barrier")
    product(PR[k], k // 3, outR[G0[k]:G0[k+1]] + [[] for _ in range(64 - G0[k+1] + G0[k])], NQ[k], bfR, k < 3)
stamp()
if PROF == 2:
    A("s_waitcnt lgkmcnt(0)")
    for k in range(14): A(f"v_writelane_b32 v255, s{74+2*k}, {k}")
    A("s_mov_b32 s72, 14")
A("L_loop:")
for k in range(6):
    A(res[(k, -1)][0])
    if PR[k] == "b": A("s_barrier")
    product(PR[k], k // 3, [list(res.get((k, i), [])) for i in range(64)], NQ[k])
A("s_cbranch_scc1 L_loop")
stamp()
a_, b_, c_ = ACC["a"], ACC["b"], ACC["c"]
def pr(r): return f"v[{r}:{r+1}]"
for i in range(4): A(f"v_mov_b32_dpp v{T0+i}, v{a_+i} row_shl:1 row_mask:0xf bank_mask:0xf bound_ctrl:0")
A(f"""v_and_b32 v13, 15, {vLane}
s_cmp_eq_u32 {sM}, 31
s_cselect_b32 s50, 5, 16
s_cselect_b32 s51, 5, 15
v_cmp_gt_u32 s[52:53], s50, v13
v_cmp_gt_u32 s[54:55], s51, v13
s_nop 3""")
for j in range(8):
    for h in range(2):
        A(f"v_pk_add_f32 {pr(c_+4*j+2*h)}, {pr(c_+4*j+2*h)}, {pr(b_+4*j+2*h)} neg_lo:[0,1] neg_hi:[0,1]")
    for h in range(2):
        A(f"v_pk_add_f32 {pr(b_+4*j+2*h)}, {pr(b_+4*j+2*h)}, {pr(a_+4*j+2*h)}")
    for h in range(2):
        nx = a_+4*(j+1)+2*h if j < 7 else T0+2*h
        A(f"v_pk_add_f32 {pr(c_+4*j+2*h)}, {pr(c_+4*j+2*h)}, {pr(nx)} neg_lo:[0,1] neg_hi:[0,1]")
A('s_waitcnt vmcnt(0)')
for i in range(4): A(f"v_cndmask_b32 v{T0+4+i}, 0, v{c_+28+i}, s[54:55]")
SUM, SQ = 112, 116
vals = [b_+4*j for j in range(8)] + [c_+4*j for j in range(7)] + [T0+4]
for k, r in enumerate(vals):
    for h in range(2):
        if k == 1: A(f"v_pk_add_f32 {pr(SUM+2*h)}, {pr(vals[0]+2*h)}, {pr(r+2*h)}")
        elif k > 1: A(f"v_pk_add_f32 {pr(SUM+2*h)}, {pr(SUM+2*h)}, {pr(r+2*h)}")
        if k == 0: A(f"v_pk_mul_f32 {pr(SQ+2*h)}, {pr(r+2*h)}, {pr(r+2*h)}")
        else: A(f"v_pk_fma_f32 {pr(SQ+2*h)}, {pr(r+2*h)}, {pr(r+2*h)}, {pr(SQ+2*h)}")
for i in range(8): A(f"v_cndmask_b32 v{SUM+i}, 0, v{SUM+i}, s[52:53]")
def rowreduce(base):
    for sh in (8, 4, 2, 1):
        for i in range(8): A(f"v_add_f32_dpp v{base+i}, v{base+i}, v{base+i} row_ror:{sh} row_mask:0xf bank_mask:0xf")
rowreduce(SUM)
A(f"""v_cmp_eq_u32 vcc, 1, v13
v_cmp_eq_u32 s[50:51], 2, v13
v_cmp_eq_u32 s[56:57], 3, v13
v_cmp_gt_u32 s[58:59], 4, v13
v_cndmask_b32 v120, v{SUM}, v{SUM+1}, vcc
v_cndmask_b32 v122, v{SQ}, v{SQ+1}, vcc
v_cndmask_b32 v120, v120, v{SUM+2}, s[50:51]
v_cndmask_b32 v122, v122, v{SQ+2}, s[50:51]
v_cndmask_b32 v120, v120, v{SUM+3}, s[56:57]
v_cndmask_b32 v122, v122, v{SQ+3}, s[56:57]
v_mov_b32 v121, {sNA}
v_mov_b32 v123, {sNB}
s_lshl_b32 s50, {sB}, 4
s_add_u32 s50, s50, {sNu}
s_lshl_b32 s50, s50, 13
s_add_u32 s50, s50, {STAT_OFF}
s_lshl_b32 s51, {sM}, 8
s_add_u32 s51, s51, s50
v_lshrrev_b32 v14, 4, {vLane}
v_lshlrev_b32 v14, 6, v14
v_and_b32 v15, 3, v13
v_lshl_add_u32 v14, v15, 4, v14
v_lshrrev_b32 v15, 2, v13
v_lshl_add_u32 v14, v15, 8, v14
s_mov_b64 exec, s[58:59]
buffer_store_dwordx4 v[120:123], v14, s[32:35], s51 offen sc1
s_mov_b64 exec, -1""")
stamp()
for k in range(3): A(f"v_lshlrev_b32 v{vG+k}, 16, v{vG+k}")
A(f"""s_mul_i32 s51, {sB}, {7985*512}
s_add_u32 s8, s26, s51
s_addc_u32 s9, s27, 0
s_mov_b32 s10, {7985*512}
s_mul_i32 s51, {sM}, {255*512}
s_lshl_b32 s56, {sNu}, 5
s_add_u32 s51, s51, s56
v_lshrrev_b32 v15, 4, {vLane}
v_lshlrev_b32 v15, 3, v15
v_lshl_add_u32 v15, v13, 13, v15
v_add_u32 v15, s51, v15
v_add_u32 v136, 4096, v15
v_mov_b32 v137, 0x40000000
v_cndmask_b32 v137, v137, v136, s[54:55]
s_add_u32 s51, s50, 4096
s_mov_b32 {sCnt}, 30000
L_poll2:""")
P = 152
if int(OPT.get("psleep", 0)): A(f"s_sleep {OPT['psleep']}")
for k in range(8):
    A(f"buffer_load_dwordx4 v[{P+4*k}:{P+4*k+3}], v14, s[32:35], {'s50' if k < 4 else 's51'} offen offset:{(k & 3)*1024} sc1")
A(f"s_sub_u32 {sCnt}, {sCnt}, 1\ns_cbranch_scc1 L_poll2_done")
for k in range(8):
    A(f"s_waitcnt vmcnt({7-k})")
    A(f"v_xor_b32 v{P+4*k+1}, {sNA}, v{P+4*k+1}\nv_xor_b32 v{P+4*k+3}, {sNB}, v{P+4*k+3}")
    if k == 0: A(f"v_or_b32 v138, v{P+1}, v{P+3}")
    else: A(f"v_or3_b32 v138, v138, v{P+4*k+1}, v{P+4*k+3}\nv_add_f32 v{P}, v{P}, v{P+4*k}\nv_add_f32 v{P+2}, v{P+2}, v{P+4*k+2}")
A("""v_cmp_ne_u32 vcc, 0, v138
s_cbranch_vccnz L_poll2
L_poll2_done:""")
stamp()
import struct
def f2h(x): return hex(struct.unpack("<I", struct.pack("<f", x))[0])
DP = "row_mask:0xf bank_mask:0xf"
A(f"""s_mov_b32 s50, {f2h(1.0/7985)}
s_mov_b32 s51, {f2h(1e-5)}
v_add_f32_dpp v{P}, v{P}, v{P} row_ror:4 {DP}
v_add_f32_dpp v{P+2}, v{P+2}, v{P+2} row_ror:4 {DP}
s_nop 0
v_add_f32_dpp v{P}, v{P}, v{P} row_ror:8 {DP}
v_add_f32_dpp v{P+2}, v{P+2}, v{P+2} row_ror:8 {DP}
v_mul_f32 v{P}, s50, v{P}
v_mul_f32 v{P+2}, s50, v{P+2}
v_fma_f32 v{P+2}, -v{P}, v{P}, v{P+2}
v_max_f32 v{P+2}, 0, v{P+2}
v_add_f32 v{P+2}, s51, v{P+2}
v_rsq_f32 v{P+2}, v{P+2}
v_add_f32 v{P}, v{P}, v{vG+2}
v_sub_f32 v{P}, v{vG+2}, v{P}
v_mul_f32 v{P+2}, v{P+2}, v{vG}
v_fma_f32 v{P}, v{P}, v{P+2}, v{vG+1}""")
A(f"""s_lshl_b32 s50, {sN}, 1
s_or_b32 s51, {sM}, {sB}
s_cmp_eq_u32 s51, 0
s_cbranch_scc0 L_noep
v_mov_b32 v138, {sNA}
s_lshl_b32 s50, {sN}, 8
s_add_u32 s50, s50, {EPOCH_OFF}
v_mov_b32 v139, s50
v_cmp_eq_u32 vcc, 0, v0
s_and_saveexec_b64 s[50:51], vcc
buffer_store_dword v138, v139, s[32:35], 0 offen sc1
s_mov_b64 exec, s[50:51]
L_noep:""")
for i in range(4):
    A(f"v_mov_b32_dpp v{SQ+i}, v{P+2} quad_perm:[{i},{i},{i},{i}] {DP}\nv_mov_b32_dpp v{SUM+i}, v{P} quad_perm:[{i},{i},{i},{i}] {DP}")
A(f"""v_mov_b32 v140, {f2h(-2.302208198)}
v_mov_b32 v141, {f2h(-2.302208198)}
v_mov_b32 v142, {f2h(-0.1029432397)}
v_mov_b32 v143, {f2h(-0.1029432397)}""")
for j in range(8):
    regs = [b_+4*j, b_+4*j+2, c_+4*j, c_+4*j+2]
    tp = [152 + 2*k for k in range(4)]
    for k, r in enumerate(regs): A(f"v_pk_fma_f32 {pr(r)}, {pr(r)}, {pr(SQ+2*(k&1))}, {pr(SUM+2*(k&1))}")
    for r, t in zip(regs, tp): A(f"v_pk_mul_f32 {pr(t)}, {pr(r)}, {pr(r)}")
    for r, t in zip(regs, tp): A(f"v_pk_fma_f32 {pr(t)}, {pr(t)}, v[142:143], v[140:141]")
    for r, t in zip(regs, tp): A(f"v_pk_mul_f32 {pr(t)}, {pr(t)}, {pr(r)}")
    for t in tp: A(f"v_exp_f32 v{t}, v{t}\nv_exp_f32 v{t+1}, v{t+1}")
    for t in tp: A(f"v_pk_add_f32 {pr(t)}, {pr(t)}, 1.0 op_sel_hi:[1,0]")
    for t in tp: A(f"v_rcp_f32 v{t}, v{t}\nv_rcp_f32 v{t+1}, v{t+1}")
    for r, t in zip(regs, tp): A(f"v_pk_mul_f32 {pr(t)}, {pr(t)}, {pr(r)}")
    d = 160 + 4*(j & 1)
    for k, t in enumerate(tp): A(f"v_cvt_pk_bf16_f32 v{d+k}, v{t}, v{t+1}")
    for par in range(2):
        row = 2*j + par
        va = "v15" if row < 8 else ("v136" if row < 15 else "v137")
        A(f"buffer_store_dwordx2 v[{d+2*par}:{d+2*par+1}], {va}, s[8:11], 0 offen offset:{(row & 7)*512} {OPT.get('omode','').replace('_',' ')}")
if STAMP:
    stamp()
    A("s_waitcnt vmcnt(0)")
    stamp()
    if STAMP == 2:
        A("s_cmp_eq_u32 s2, 100\ns_cbranch_scc0 L_end\ns_mov_b32 s8, s28\ns_mov_b32 s9, s29\ns_mov_b32 s10, 256\nv_mov_b32 v13, 0\nv_cmp_eq_u32 vcc, 0, v0\ns_and_saveexec_b64 s[50:51], vcc")
        for k in range(1, nstamp[0]):
            A(f"s_sub_u32 s50, s{74+2*k}, s74\nv_mov_b32 v14, s50\nbuffer_store_dword v14, v13, s[8:11], 0 offen offset:{4*k}\ns_nop 1")
        A("s_waitcnt vmcnt(0)\ns_endpgm")
    A(f"s_add_u32 s8, s30, {200<<20}\ns_addc_u32 s9, s31, 0\ns_mov_b32 s10, 65536\ns_lshl_b32 s50, s2, 7\nv_mov_b32 v13, s50\nv_cmp_eq_u32 vcc, 0, v0\ns_and_saveexec_b64 s[50:51], vcc")
    for k in range(nstamp[0]): A(f"v_mov_b32 v14, s{74+2*k}\nv_mov_b32 v15, s{75+2*k}\nbuffer_store_dwordx2 v[14:15], v13, s[8:11], 0 offen offset:{8*k}\ns_nop 1")
if PROF:
    A(f"s_memtime s[70:71]\ns_mov_b32 m0, s72\ns_waitcnt lgkmcnt(0)\nv_writelane_b32 v255, s70, m0\ns_add_u32 s8, s30, {200<<20}\ns_addc_u32 s9, s31, 0\ns_mov_b32 s10, 65536\ns_lshl_b32 s50, s2, 8\nv_lshl_add_u32 v13, v0, 2, s50\nv_cmp_gt_u32 vcc, 64, v0\ns_and_saveexec_b64 s[50:51], vcc\nbuffer_store_dword v255, v13, s[8:11], 0 offen")
A("L_end:\ns_endpgm")
A(f"""L_spin:
s_mov_b32 s52, 30000
L_spin1:
buffer_load_dwordx2 v[150:151], v149, s[32:35], 0 offen offset:{FLAG_OFF} sc1
s_sub_u32 s52, s52, 1
s_cbranch_scc1 L_spin_ret
s_waitcnt vmcnt(0)
v_cmp_eq_u32 vcc, {sNA}, v150
v_cmp_eq_u32 s[50:51], {sNB}, v151
s_and_b64 vcc, vcc, s[50:51]
s_cmp_eq_u64 vcc, -1
s_cbranch_scc0 L_spin1
s_branch L_spin_ret
L_codeend:""")
A(f""".section .rodata,"a"
.p2align 6
.amdhsa_kernel {KN}
.amdhsa_next_free_vgpr 512
.amdhsa_next_free_sgpr 102
.amdhsa_accum_offset 256
.amdhsa_group_segment_fixed_size 0
.amdhsa_kernarg_size 64
.amdhsa_user_sgpr_count 2
.amdhsa_user_sgpr_kernarg_segment_ptr 1
.amdhsa_system_sgpr_workgroup_id_x 1
.end_amdhsa_kernel""")
pend = 0
for l in o:
    l = l.strip()
    if re.match(r"s_\w+ m0,", l) and not PROF:
        assert pend == 0, "m0 collision"; pend = 1
    if l.startswith("buffer_load") and l.endswith("lds"):
        assert pend == 1 or PROF, "m0 missing"; pend = 0
print("\n".join(o))
```

```python
import sys, re
OPT = dict(a.split("=") if "=" in a else (a, "1") for a in sys.argv[1:])
STAMP = int(OPT.get("stamp", 0))
PROF = int(OPT.get("prof", 0))
KN = "standalone__self_sup_conv_stem_hubert__speech_kernel"
o = []
def A(s):
    for l in s.split("\n"):
        l = l.strip()
        if l: o.append(l if l.endswith(":") or l.startswith((".", ";")) else "    " + l)

XS = [0, 17408]; OOFF = 8704; CL = 1088
SS = [34816, 43520]
STG = 65536
RB0 = 100352
R15 = 52224
PAIR = 65536
ROT = int(OPT.get('rot', 0))
LDS = RB0 + 4*15360
WSTREAM = 393216
MISC = 8 << 20
FLAG_OFF = 0; STAT_OFF = 1 << 20; EPOCH_OFF = 2 << 20
ACC = {"a": 16, "b": 48, "c": 80}
def acc(p, j): r = ACC[p] + 4*j; return f"v[{r}:{r+3}]"
XSET = {"a": 0, "b": 60, "c": 120}
def xf(p, s): r = XSET[p] + 4*s; return f"a[{r}:{r+3}]"
def bf(p, q):
    if p == "c": r = 112 + 4*q; return f"v[{r}:{r+3}]"
    r = {"a": 180, "b": 212}[p] + 4*q; return f"a[{r}:{r+3}]"
vLane, vL16, vR0, vR1, vSO, vSE1, vT = "v1", "v2", "v3", "v4", "v5", "v6", "v7"
vX = ["v8", "v9", "v10", "v11", "v12"]
vR0x, vR1x, vSOx, vTx = "v184", "v185", "v186", "v187"
sXo1 = "s60"
vG = 144
T0 = 152
sB, sN, sM, sW, sNu = "s36", "s37", "s38", "s39", "s40"
sNA, sNB, sE = "s41", "s42", "s43"
sWo, sXo, sCnt, sM0 = "s44", "s45", "s46", "s47"
sTmp = [f"s{i}" for i in range(48, 60)]
nstamp = [0]
def stamp():
    if STAMP:
        k = nstamp[0]; nstamp[0] += 1
        A(f"s_memrealtime s[70:71]\ns_memtime s[72:73]\ns_waitcnt lgkmcnt(0)\ns_mov_b32 s{74+2*k}, s70\ns_mov_b32 s{75+2*k}, s72")
RA_, RB_ = 188, 220
vWr, vTr0, vTr15 = "v252", "v253", "v254"
sRB, sR15 = "s62", "s63"
def sT(q): return "0" if q == 0 else ["s64", "s65", "s66", "s67", "s68", "s69", "s61"][q-1]
MAP = int(OPT.get("map", 1))
if MAP == 0: MAPC = f"s_bfe_u32 {sN}, s2, 0x20001\ns_lshr_b32 {sM}, s2, 3"
elif MAP == 1: MAPC = f"s_bfe_u32 {sN}, s2, 0x20003\ns_bfe_u32 {sM}, s2, 0x20001\ns_lshr_b32 s48, s2, 5\ns_lshl_b32 {sM}, {sM}, 3\ns_add_u32 {sM}, {sM}, s48"
else: MAPC = f"s_bfe_u32 {sN}, s2, 0x10001\ns_bfe_u32 s48, s2, 0x10003\ns_lshl_b32 {sN}, {sN}, 1\ns_add_u32 {sN}, {sN}, s48\ns_bfe_u32 {sM}, s2, 0x10002\ns_lshl_b32 {sM}, {sM}, 4\ns_lshr_b32 s48, s2, 4\ns_add_u32 {sM}, {sM}, s48"
hdr = open("standalone__self_sup_conv_stem_hubert__speech.s.ref").read().split("; Override launch")[0]
for l in hdr.strip().split("\n"): o.append(l)
A(f"; @launch grid=(256,1,1) block=(256,1,1) lds={LDS}")
A(f'.amdgcn_target "amdgcn-amd-amdhsa--gfx950"\n.text\n.globl {KN}\n.p2align 8\n.type {KN},@function\n{KN}:')
A("s_cmp_ge_u32 s2, 256\ns_cbranch_scc1 L_end")
A("s_load_dwordx16 s[16:31], s[0:1], 0")
if OPT.get("pst"): A("s_memrealtime s[74:75]\ns_memtime s[72:73]"); nstamp[0] += 1
else: stamp()
A(f"""v_lshrrev_b32 v13, 6, v0
v_and_b32 {vLane}, 63, v0
s_and_b32 {sB}, s2, 1
v_readfirstlane_b32 {sW}, v13
{MAPC}
v_lshlrev_b32 {vL16}, 4, {vLane}
s_lshl_b32 {sNu}, {sN}, 2
s_add_u32 {sNu}, {sNu}, {sW}""")
A(f"""v_lshrrev_b32 v13, 3, v0
v_bfe_u32 v14, v0, 4, 1
v_bfe_u32 v15, v0, 6, 1
v_lshl_add_u32 v14, v15, 1, v14
v_bfe_u32 v15, v0, 1, 2
v_xor_b32 v14, v14, v15
v_lshlrev_b32 v14, 5, v14
v_lshl_add_u32 v14, v13, 9, v14
v_and_b32 v15, 1, v0
v_lshl_add_u32 v14, v15, 4, v14
s_lshl_b32 s48, {sN}, 7
v_add_u32 v14, s48, v14
s_lshl_b32 s48, {sNu}, 5""")
A(f"""s_lshr_b32 s50, {sM}, 1
s_and_b32 s51, {sM}, 1
s_lshl_b32 s51, s51, 1
s_add_u32 s51, s51, {sB}
s_and_b32 s52, s50, 1
s_lshl_b32 s49, s51, 3
s_add_u32 s49, s49, s52
s_lshl_b32 s49, s49, 17
s_lshr_b32 s52, s50, 1
s_lshl_b32 s52, s52, 14
s_add_u32 s49, s49, s52
s_mul_i32 s53, s50, 24576
s_lshl_b32 s52, s51, 11
s_add_u32 s53, s53, s52
s_lshl_b32 {sM0}, {sW}, 10
s_mov_b32 s10, 4063232
s_mov_b32 s11, 0x20000
s_mov_b32 s6, 16384000
s_mov_b32 s7, 0x20000
s_mul_i32 s55, {sM}, {255*2*512}
s_mul_i32 s56, {sB}, 8192000
s_add_u32 s55, s55, s56
s_lshl_b32 s56, {sW}, 4
s_movk_i32 s57, 241""")
def xaddr(dst, Rv, gv, sh):
    A(f"""v_cmp_le_u32 vcc, 136, {Rv}
v_subrev_u32 v15, 136, {Rv}
s_nop 0
v_cndmask_b32 {Rv}, {Rv}, v15, vcc
v_cndmask_b32 v150, 0, 2, vcc
v_mul_u32_u24 v15, s57, {Rv}
v_lshrrev_b32 v15, 12, v15
v_mul_u32_u24 v151, 17, v15
v_sub_u32 {Rv}, {Rv}, v151
v_lshl_add_u32 v15, {Rv}, 3, v15
v_lshl_add_u32 v15, v15, 2, v150
v_lshlrev_b32 v15, 9, v15
v_lshrrev_b32 {Rv}, 1, {Rv}
v_and_b32 {Rv}, 2, {Rv}
v_xor_b32 {Rv}, {Rv}, {gv}
v_lshl_add_u32 v15, {Rv}, 4, v15
v_add_u32 {dst}, s55, v15""")
A(f"v_lshrrev_b32 v152, 2, {vLane}\nv_add_u32 v152, s56, v152\nv_and_b32 v153, 3, {vLane}")
for k in range(4):
    A(f"v_add_u32 v13, {64*k}, v152")
    xaddr(vX[k], "v13", "v153", 0)
A(f"s_lshl_b32 s56, {sW}, 2\ns_add_u32 s56, s56, 256\nv_lshrrev_b32 v13, 4, {vLane}\nv_add_u32 v13, s56, v13\nv_bfe_u32 v153, {vLane}, 2, 2")
xaddr(vX[4], "v13", "v153", 0)
A(f"v_and_b32 v13, 3, {vLane}\nv_lshl_add_u32 {vX[4]}, v13, 2, {vX[4]}")
A(f"s_lshl_b32 s58, {sW}, 8\ns_add_u32 s58, s58, 16384\ns_mov_b32 {sXo}, 0\ns_movk_i32 {sXo1}, 512")
A(f"s_add_u32 {sRB}, {sM0}, {RB0}\ns_add_u32 {sR15}, {sM0}, {R15}\ns_add_u32 m0, {sM0}, {STG}")
for q in range(1, 8): A(f"s_mov_b32 {sT(q)}, {q*524288}")
A(f"""v_mov_b32 {vWr}, v14
s_lshl_b32 s52, {sN}, 8
s_add_u32 s52, s52, {EPOCH_OFF}
s_waitcnt lgkmcnt(0)
s_mov_b32 s8, s18
s_mov_b32 s9, s19
s_mov_b32 s4, s16
s_mov_b32 s5, s17""")
if OPT.get("pst"): A("s_mov_b32 s75, s72"); stamp()
for k in range(4):
    A(f"buffer_load_dwordx4 v14, s[8:11], s49 offen lds")
    if k < 3: A(f"s_add_u32 m0, m0, 4096\ns_add_u32 s49, s49, 262144")
A(f"s_add_u32 s32, s30, {MISC}\ns_addc_u32 s33, s31, 0\ns_load_dword {sE}, s[32:33], s52")
def xdma_list(slot, soff):
    L = []
    for k in range(4):
        L.append([f"s_add_u32 m0, {sM0}, {XS[slot] + 4096*k}", f"buffer_load_dwordx4 {vX[k]}, s[4:7], {soff} offen lds"])
    L.append([f"s_add_u32 m0, s58, {XS[slot]}", f"buffer_load_dword {vX[4]}, s[4:7], {soff} offen lds"])
    return L
for m0, ld in xdma_list(0, sXo): A(m0 + "\ns_nop 0\n" + ld)
def wdma(slot, q): return [f"s_add_u32 m0, {sRB}, {slot*4096}" if slot < 15 else f"s_mov_b32 m0, {sR15}", f"buffer_load_dwordx4 {vWr}, s[8:11], {sT(q)} offen lds"]
for q in range(8): m0, ld = wdma(q, q); A(m0 + "\ns_nop 0\n" + ld)
if OPT.get("pst"): stamp()
NWARM = int(OPT.get("warm", 2))
A(f"v_add_u32 {vWr}, {2*131072}, v14")
A(f"""v_and_b32 v13, 15, {vLane}
v_lshrrev_b32 v15, 4, {vLane}
v_lshrrev_b32 v150, 1, v13
v_and_b32 v150, 2, v150
v_xor_b32 v150, v150, v15
v_lshlrev_b32 v150, 4, v150
v_lshl_add_u32 {vR0}, v13, 6, v150
v_add_u32 v13, 1, v13
v_lshrrev_b32 v150, 1, v13
v_and_b32 v150, 2, v150
v_xor_b32 v150, v150, v15
v_lshlrev_b32 v150, 4, v150
v_lshl_add_u32 {vR1}, v13, 6, v150
s_mul_i32 s52, {sW}, {2*CL}
v_add_u32 {vSO}, s52, {vL16}
v_add_u32 {vSE1}, {2*CL}, {vSO}
v_lshrrev_b32 v13, 2, {vLane}
v_add_u32 v15, 1, v13
v_xor_b32 v13, v13, v15
v_lshrrev_b32 v13, 1, v13
v_and_b32 v13, 2, v13
v_and_b32 v150, 3, {vLane}
v_xor_b32 v13, v13, v150
v_lshlrev_b32 v13, 4, v13
v_lshl_add_u32 v13, v15, 6, v13
s_cmp_eq_u32 {sW}, 3
s_cselect_b64 vcc, -1, 0
v_cndmask_b32 {vSE1}, {vSE1}, v13, vcc
v_bfe_u32 v13, {vLane}, 4, 1
v_mul_u32_u24 v13, {CL}, v13
v_and_b32 v15, 15, {vLane}
v_lshl_add_u32 v13, v15, 2, v13
s_add_u32 s52, s52, 1024
v_add_u32 {vT}, s52, v13
v_mov_b32 {vR0x}, {vR0}
v_mov_b32 {vR1x}, {vR1}
v_mov_b32 {vSOx}, {vSO}
v_mov_b32 {vTx}, {vT}""")
A(f"""v_bfe_u32 v13, {vLane}, 3, 2
v_xor_b32 v13, {sW}, v13
v_lshlrev_b32 v13, 5, v13
v_and_b32 v15, 3, {vLane}
v_lshl_add_u32 v13, v15, 3, v13
v_bfe_u32 v15, {vLane}, 2, 2
v_lshl_add_u32 v13, v15, 7, v13
v_lshrrev_b32 v15, 4, {vLane}
v_lshl_add_u32 v13, v15, 10, v13
v_add_u32 {vTr0}, {RB0}, v13
v_add_u32 {vTr15}, {R15}, v13
v_add_u32 v14, {STG}, v13""")
A(f"""s_mul_i32 s52, {sNu}, {WSTREAM}
s_add_u32 s12, s30, s52
s_addc_u32 s13, s31, 0
s_mov_b32 s14, {WSTREAM}
s_mov_b32 s15, 0x20000
s_mov_b32 s34, {4<<20}
s_mov_b32 s35, 0x20000""")
if OPT.get("pst"): stamp()
A(f"s_waitcnt vmcnt(13)\ns_barrier")
stamp()
for k in range(4):
    A(f"ds_read_b64_tr_b16 v[{T0+4*k}:{T0+4*k+1}], v14 offset:{4096*k}\nds_read_b64_tr_b16 v[{T0+4*k+2}:{T0+4*k+3}], v14 offset:{4096*k+512}")
def addpair(d, x, y, t):
    return [f"v_lshlrev_b32 v{t}, 16, v{x}", f"v_lshlrev_b32 v{t+1}, 16, v{y}", f"v_and_b32 v{t+2}, 0xffff0000, v{x}",
            f"v_and_b32 v{t+3}, 0xffff0000, v{y}", f"v_add_f32 v{t}, v{t}, v{t+1}", f"v_add_f32 v{t+2}, v{t+2}, v{t+3}",
            f"v_cvt_pk_bf16_f32 v{d}, v{t}, v{t+2}"]
A(f"s_add_u32 s50, s53, 8192\ns_add_u32 s51, s53, 16384\ns_waitcnt lgkmcnt(0)")
A(f"s_add_u32 {sNA}, {sE}, 1\ns_mul_i32 {sNB}, {sE}, 0x9E3779B1\ns_add_u32 {sNB}, {sNB}, 0x7F4A7C15")
A(f"""buffer_store_dwordx4 v[{T0}:{T0+3}], {vL16}, s[12:15], s53 offen sc1
buffer_store_dwordx4 v[{T0+8}:{T0+11}], {vL16}, s[12:15], s53 offen offset:1024 sc1
buffer_store_dwordx4 v[{T0+4}:{T0+7}], {vL16}, s[12:15], s50 offen sc1
buffer_store_dwordx4 v[{T0+12}:{T0+15}], {vL16}, s[12:15], s50 offen offset:1024 sc1""")
for h in range(2):
    for d in range(4):
        for x in addpair(T0+16+4*h+d, T0+8*h+d, T0+8*h+4+d, T0+24): A(x)
    A(f"buffer_store_dwordx4 v[{T0+16+4*h}:{T0+19+4*h}], {vL16}, s[12:15], s51 offen offset:{1024*h} sc1")
for q in range(8): m0, ld = wdma(8 + q, q); A(m0 + "\ns_nop 0\n" + ld)
for m0, ld in xdma_list(1, sXo1): A(m0 + "\ns_nop 0\n" + ld)
A(f"""v_lshrrev_b32 v13, 4, {vLane}
v_lshlrev_b32 v13, 3, v13
v_and_b32 v15, 3, {vLane}
v_lshl_add_u32 v13, v15, 1, v13
v_add_u32 v13, s48, v13
global_load_ushort v{vG}, v13, s[22:23]
global_load_ushort v{vG+1}, v13, s[24:25]
global_load_ushort v{vG+2}, v13, s[20:21]""")
if NWARM >= 1:
    A(f"""s_and_b32 s50, {sM}, 7
s_lshl_b32 s50, s50, 2
s_add_u32 s50, s50, {sW}
s_lshr_b32 s51, s50, 1
s_lshl_b32 s51, s51, 18
s_and_b32 s50, s50, 1
s_lshl_b32 s50, s50, 13
s_add_u32 s50, s50, s51
s_lshl_b32 s51, {sN}, 7
s_add_u32 s50, s50, s51
s_add_u32 s50, s50, 131072
v_and_b32 v13, 15, {vLane}
v_lshlrev_b32 v13, 9, v13
buffer_load_dword v147, v13, s[8:11], s50 offen""")
if NWARM >= 2:
    A(f"""s_getpc_b64 s[96:97]
L_pc:
s_mov_b32 s98, L_codeend - L_pc
s_mov_b32 s99, 0x20000
s_lshr_b32 s50, s2, 3
s_and_b32 s50, s50, 7
s_lshl_b32 s50, s50, 2
s_add_u32 s50, s50, {sW}
s_lshl_b32 s50, s50, 10
v_and_b32 v13, 7, {vLane}
v_lshlrev_b32 v13, 7, v13
buffer_load_dword v147, v13, s[96:99], s50 offen""")
if OPT.get("pst"): stamp()
A(f"""v_subrev_u32 {vWr}, 131072, {vWr}
s_xor_b32 {sM0}, {sM0}, {PAIR}
s_xor_b32 s58, s58, {PAIR}
s_add_u32 {sXo}, {sXo}, 64
s_add_u32 {sXo1}, {sXo}, 512""")
A(f"""s_lshl_b32 s52, {sM}, 1
s_add_u32 s52, s52, {sB}
s_lshl_b32 s52, s52, 3
s_lshl_b32 s53, {sN}, 9
s_add_u32 s52, s52, s53
v_mov_b32 v150, {sNA}
v_mov_b32 v151, {sNB}
v_mov_b32 v148, s52
v_cmp_eq_u32 s[56:57], 0, v0
v_lshl_add_u32 v149, {vLane}, 3, s53
s_waitcnt vmcnt({22 + NWARM})
s_barrier""")
stamp()
def trrd(dst, slot):
    v, off = (vTr0, slot*4096) if slot < 15 else (vTr15, 0)
    return [f"ds_read_b64_tr_b16 v[{dst}:{dst+1}], {v} offset:{off}", f"ds_read_b64_tr_b16 v[{dst+2}:{dst+3}], {v} offset:{off+512}"]
SA, SBr, SD, ST = 160, 164, 168, 172
RA, RB, RD, RT = 176, 177, 178, 180
def s_piece(e, xs, ss):
    rd = [f"ds_read_b128 v[{SA}:{SA+3}], {vSOx} offset:{XS[xs] + OOFF + e*CL}",
          f"ds_read_b128 v[{SBr}:{SBr+3}], {vSOx if e == 0 else vSE1} offset:{XS[xs] + (CL if e == 0 else 0)}"]
    va = []
    for d in range(4): va += addpair(SD+d, SA+d, SBr+d, ST)
    wr = [f"ds_write_b128 {vSO}, v[{SD}:{SD+3}] offset:{SS[ss] + e*CL}"]
    return rd, va, wr
def r_piece(xs, ss):
    rd = [f"ds_read_b32 v{RA}, {vTx} offset:{XS[xs] + OOFF}", f"ds_read_b32 v{RB}, {vTx} offset:{XS[xs] + CL}"]
    return rd, addpair(RD, RA, RB, RT), [f"ds_write_b32 {vT}, v{RD} offset:{SS[ss]}"]
def frag_reads(p, base):
    r0, r1 = (vR0, vR1) if p == "c" else (vR0x, vR1x)
    return [f"ds_read_b128 {xf(p, s)}, {r0 if s < 8 else r1} offset:{base + (s & 7)*CL}" for s in range(15)]
rd, va, wr = s_piece(0, 0, 0); rd2, va2, wr2 = r_piece(0, 0)
for x in rd + rd2: A(x)
fr = frag_reads("a", XS[0])
pre = []
for q in range(8): pre += trrd(RA_ + 4*q, q) + fr[2*q:2*q+2]
for x in pre[:10]: A(x)
A("s_waitcnt lgkmcnt(10)")
rest = pre[10:]
for x in va + wr + va2 + wr2:
    A(x)
    if rest: A(rest.pop(0))
assert not rest
PR = ["a", "b", "c", "a", "b", "c"]; NQ = [8, 8, 8, 8, 7, 8]
BM = OPT.get("bmode", "sc1")
def bload(k, q):
    so = sWo if BM != "l1" else "0"
    return f"buffer_load_dwordx4 {bf(PR[k % 6], q)}, {vL16}, s[12:15], {so} offen offset:{1024*(q & 3)} {dict(sc1='sc1', plain='', l1='', nt='nt', sc1nt='sc1 nt')[BM]}"
SADD = f"s_add_u32 {sWo}, {sWo}, 4096"
NX = [int(c) for c in OPT.get("nx", "221")]
def layout(k):
    p = PR[k]; par = k // 3; t = par; n = 8 * NQ[k]
    fill = [[] for _ in range(64)]
    bs = [1, 9, 17, 24, 33, 40, 49, 56] if n == 64 else [1, 9, 17, 24, 33, 40, 49, 53]
    seq = [(k+2, 6), (k+2, 7)] + [(k+3, q) for q in range(6)]
    for sl, (kk, q) in zip(bs, seq):
        if q < NQ[kk % 6]: fill[sl].append((bload(kk, q), ("B", kk % 6, q)))
    adds = [(bs[1] + 1, [SADD]), (bs[5] + 1, [SADD])]
    if k == 3 and ROT:
        adds[0] = (bs[1] + 1, [SADD, f"s_cmp_eq_u32 {sWo}, {WSTREAM}"])
        adds += [(bs[1] + 2, [f"s_cselect_b32 {sWo}, 0, {sWo}", f"s_cmp_eq_u32 {sCnt}, 1"]), (bs[1] + 3, [f"s_cselect_b32 {sWo}, s59, {sWo}"])]
    for sl, L in adds: fill[sl] += [(x, None) for x in L]
    xl = xdma_list(par, sXo if par == 0 else sXo1)
    x0 = sum(NX[:k % 3]); xs = [13, 29, 45][:NX[k % 3]] if NX[k % 3] > 1 else [13]
    for j in range(NX[k % 3]):
        fill[xs[j] - 1].append((xl[x0 + j][0], None)); fill[xs[j]].append((xl[x0 + j][1], ("X", par, x0 + j)))
    for q2 in range(1, 4): fill[16*q2 - 1].append((("VW", ("B", k, min(2*q2 + 1, NQ[k] - 1))), None))
    if p == "a": piece = s_piece(1, t, t); R = frag_reads("b", XS[t] + OOFF)
    elif p == "b": piece = r_piece(1-t, 1-t); R = frag_reads("c", SS[t])
    else: piece = s_piece(0, 1-t, 1-t); R = frag_reads("a", XS[1-t])
    rd, va, wr = piece
    misc = []
    if k == 0: misc = [[f"s_cmp_eq_u32 {sCnt}, 1", "s_cselect_b32 s6, 0, s6"]]
    seq = misc + [rd[0], rd[1], R[0], R[1], R[2], R[3], ("LW", rd[1])]
    v = list(va); rr = R[4:]
    per = 3 if p != "b" else 1
    while rr:
        for _ in range(per):
            if v: seq.append(v.pop(0))
        seq.append(rr.pop(0))
    seq += v + wr
    if k == 3: seq += [[f"v_xor_b32 {x}, {PAIR}, {x}"] for x in (vR0x, vR1x, vSOx, vSE1, vTx)]
    if k == 5: seq += [[f"s_xor_b32 {sM0}, {sM0}, {PAIR}", f"s_xor_b32 s58, s58, {PAIR}"], [f"s_add_u32 {sXo}, {sXo}, {0 if OPT.get('xfix') else 64}", f"s_and_b32 {sXo}, {sXo}, 0x1ff"],
                       [f"s_add_u32 {sXo1}, {sXo}, 512", f"s_sub_u32 {sCnt}, {sCnt}, 1"], f"s_cmp_lg_u32 {sCnt}, 0"]
    free = [i for i in range(n - 1) if not fill[i]]
    shared = [i for i in range(n - 1) if len(fill[i]) == 1 and fill[i][0][1] is None]
    lim = n - 7
    need = len(seq) - (5 if k == 3 else 4 if k == 5 else 0)
    sl = [i for i in free if i <= lim]
    sh = [i for i in shared if i <= lim]
    dup = [i for i in free if 18 <= i <= lim][::5]
    while len(sl) < need:
        if sh: sl.append(sh.pop(0))
        else: sl.append(dup.pop(0))
    sl = sorted(sl)[:need] if len(sl) == need else sorted(sl)
    if len(sl) > need:
        sl = [sl[round(i * (len(sl) - 1) / (need - 1))] for i in range(need)] if OPT.get("spread", "1") == "1" else sl[:need]
    tail = [i for i in range(sl[-1] + 1, n) if not fill[i] or (len(fill[i]) == 1 and fill[i][0][1] is None)]
    sl += tail
    assert len(sl) >= len(seq), (k, len(sl), len(seq))
    for i, it in zip(sl, seq):
        for x in (it if isinstance(it, list) else [it]): fill[i].append((x, None))
    return fill
fills = [layout(k) for k in range(6)]
starts = []
for k in range(6):
    m = [("B", k, 1)]
    if PR[k] == "b": m.append(("X", 1 - k // 3, 4))
    starts.append(m)
flat = []
for k in range(6):
    flat.append((k, -1, ("VS", starts[k]), None))
    for i in range(64):
        for (x, tag) in fills[k][i]: flat.append((k, i, x, tag))
def vcount(idx, marker):
    n = 0
    for d in range(1, len(flat)):
        tag = flat[idx - d][3]
        if tag == marker: return n
        if tag is not None: n += 1
    assert False
res = {}
for idx, (k, i, x, tag) in enumerate(flat):
    if isinstance(x, tuple):
        if x[0] == "VS": y = f"s_waitcnt vmcnt({min(vcount(idx, m) for m in x[1])}) lgkmcnt(0)"
        elif x[0] == "VW": y = f"s_waitcnt vmcnt({vcount(idx, x[1])})"
        else:
            n = 0; d = 1
            while flat[idx - d][2] != x[1]:
                if isinstance(flat[idx - d][2], str) and flat[idx - d][2].startswith("ds_"): n += 1
                d += 1
            y = f"s_waitcnt lgkmcnt({n})"
    else: y = x
    res.setdefault((k, i), []).append(y)
def product(p, par, fill, nq, bfn=None, zero=False):
    bfn = bfn or bf
    i = 0
    if PROF == 1:
        fill[52].append("s_memtime s[70:71]")
        fill[4].append("s_mov_b32 m0, s72"); fill[6].append("v_writelane_b32 v255, s70, m0"); fill[7].append("s_add_u32 s72, s72, 1")
    for q2 in range(4):
        for j in range(8):
            for q in (2*q2, 2*q2+1):
                if q >= nq: continue
                A(f"v_mfma_f32_16x16x32_bf16 {acc(p, j)}, {bfn(p, q)}, {xf(p, j+q)}, {0 if zero and q == 0 else acc(p, j)}")
                for x in fill[i]:
                    ab = OPT.get("abl", "")
                    if "V" in ab and x.startswith("v_") and "xor" not in x and "writelane" not in x: continue
                    if "B" in ab and x.startswith("buffer_load") and "lds" not in x: continue
                    if "X" in ab and x.startswith("buffer_load") and "lds" in x: continue
                    if "R" in ab and x.startswith("ds_read_b128 a"): continue
                    if "S" in ab and (x.startswith("ds_write") or x.startswith("ds_read_b128 v") or x.startswith("ds_read_b32")): continue
                    A(x)
                i += 1
    assert all(not f for f in fill[i:]), (p, par)
def place(fill, items, slots):
    assert len(items) <= len(slots), (len(items), len(slots))
    for it, s in zip(items, slots): fill[s] += it if isinstance(it, list) else [it]


G0 = [0, 64, 128, 192, 256, 312, 376]
items = []
def item(text, e, d, preds=(), cost=None, tag=None, lw=None, vw=None):
    t = text if isinstance(text, list) else [text]
    c = cost if cost is not None else len(t) + (lw is not None) + (vw is not None)
    items.append(dict(t=t, e=e, d=d, preds=list(preds), cost=c, tag=tag, lw=lw, vw=vw, g=None)); return len(items) - 1
def chain(L, e, d, first_preds=(), lw=None, vw=None):
    ids = []
    for i, x in enumerate(L):
        ids.append(item(x, e, d, (list(first_preds) if i == 0 else [(ids[-1], 0)]), lw=lw if i == 0 else None, vw=vw if i == 0 else None))
    return ids
def fixed(text, g, tag=None, cost=None, vw=None): return item(text, g, g, cost=cost, tag=tag, vw=vw)
def fdma(pair, g, tag): fixed(pair[0], g - 1); fixed(pair[1], g, tag=tag, cost=2)
GB1 = int(OPT.get("gb1", 8)); GB3 = int(OPT.get("gb3", 150))
fixed("s_barrier", GB1, vw=("Wb0", 7)); fixed("s_barrier", 127, vw=("Wa1", 7)); fixed("s_barrier", GB3, vw=("Wb1", 6))
for q in range(8): fdma(wdma(q, q), GB1 + 3 + 5*q, ("Wa1", q))
x2 = xdma_list(0, sXo); x3 = xdma_list(1, sXo1)
for j, g in enumerate([52, 58, 112, 120, 136]): fdma(x2[j], g, ("X2", j))
fixed(f"v_add_u32 {vWr}, {2*131072}, {vWr}", 62)
fixed(["s_mov_b64 exec, s[56:57]", f"buffer_store_dwordx2 v[150:151], v148, s[32:35], 0 offen offset:{FLAG_OFF} sc1", "s_mov_b64 exec, -1"], 64, tag=("F", 0))
for q in range(7): fdma(wdma(8 + q, q), 68 + 6*q, ("Wb1", q))
fdma(x3[0], 200, ("X", 1, 0))
PG = int(OPT.get("pollg", 230))
fixed(f"buffer_load_dwordx2 v[150:151], v149, s[32:35], 0 offen offset:{FLAG_OFF} sc1", PG, tag=("P", 0), cost=2)
fixed(f"v_cmp_eq_u32 vcc, {sNA}, v150", 251, vw=("P", 0)); fixed(f"v_cmp_eq_u32 s[50:51], {sNB}, v151", 252)
fixed(["s_and_b64 vcc, vcc, s[50:51]", "s_cmp_eq_u64 vcc, -1"], 253); fixed(["s_cbranch_scc0 L_spin", "L_spin_ret:"], 254, cost=1)
for j, x in enumerate((vR0x, vR1x, vSOx, vSE1, vTx)): fixed(f"v_xor_b32 {x}, {PAIR}, {x}", 250 + j)
emu = []; started = False
for (k, i, x, tag) in flat:
    if k < 3: continue
    if tag and tag[0] == "B" and tag[1] == 0: started = True
    if not started: continue
    if tag or x == SADD: emu.append((x, tag))
nv = sum(1 for x, tag in emu if tag) - 6
gs = [257 + round(j * 68 / (nv - 1)) for j in range(nv)] + [312 + z for z in (17, 24, 33, 40, 49, 56)]
j = 0
for x, tag in emu:
    if tag is None: fixed(x, gs[j-1] + 1)
    elif tag[0] == "B": fixed(x, gs[j], tag=tag, cost=2); j += 1
    else: fdma(x3[tag[2]], gs[j], tag); j += 1
for j, L in enumerate([[f"s_xor_b32 {sM0}, {sM0}, {PAIR}", f"s_xor_b32 s58, s58, {PAIR}"], [f"s_add_u32 {sXo}, {sXo}, 64", f"s_add_u32 {sXo1}, {sXo1}, 64"]]): fixed(L, 372 + j)
def piece_chain(piece, e, d, preds=()):
    rd, va, wr = piece
    r = chain(rd, e, d, preds)
    return chain(va + wr, e, d, [(r[-1], 6)], lw=r[-1])
chain(frag_reads("b", XS[0] + OOFF), 0, 56)
sp = piece_chain(s_piece(1, 0, 0), 0, 57)
sp = piece_chain(s_piece(0, 1, 1), 64, 240, [(sp[-1], 0)])
sp = piece_chain(s_piece(1, 1, 1), 64, 248, [(sp[-1], 0)])
sp = piece_chain(s_piece(0, 0, 0), 256, 369, [(sp[-1], 0)])
piece_chain(r_piece(1, 1), 64, 240); piece_chain(r_piece(0, 0), 256, 369)
chain(frag_reads("c", SS[0]), 64, 120); chain(frag_reads("a", XS[1]), 64, 184)
chain(frag_reads("b", XS[1] + OOFF), 128, 248); chain(frag_reads("c", SS[1]), 256, 304); chain(frag_reads("a", XS[0]), 256, 368)
FT = 152
prev = None; tb = []; fs0 = []
for q in range(8):
    tb.append(chain(trrd(RB_ + 4*q, 8 + q), GB1 + 1, 56, [(tb[-1][-1], 0)] if q else []))
for q in range(8):
    va = sum((addpair(112 + 4*q + d, RA_ + 4*q + d, RB_ + 4*q + d, FT) for d in range(4)), [])
    fs0.append(chain(va, 0, 128 + 16*(q >> 1) - 3, [(tb[q][-1], 6)] + ([(fs0[-1][-1], 0)] if q else []), lw=tb[q][-1]))
ta = []; tb1 = []
for q in range(8):
    ta.append(chain(trrd(RA_ + 4*q, q), 128, 184, [(fs0[q][-1], 0)] + ([(ta[-1][-1], 0)] if q else [])))
for q in range(7):
    tb1.append(chain(trrd(RB_ + 4*q, 8 + q), GB3 + 1, 248, [(fs0[q][-1], 0)] + ([(tb1[-1][-1], 0)] if q else [])))
last = fs0[-1][-1]
for q in range(7):
    va = sum((addpair(112 + 4*q + d, RA_ + 4*q + d, RB_ + 4*q + d, FT) for d in range(4)), [])
    c = chain(va, 128 + 16*((q >> 1) + 1), 312 + 16*(q >> 1) - 3, [(tb1[q][-1], 6), (ta[q][-1], 6), (last, 0)], lw=[tb1[q][-1], ta[q][-1]]); last = c[-1]
chain(trrd(112 + 28, 7), 192, 248, [(ta[7][-1], 0)])
for i in reversed(range(len(items))):
    for (p, dist) in items[i]["preds"]:
        items[p]["d"] = min(items[p]["d"], items[i]["d"] - max(dist, 0.5))
fillR = [[] for _ in range(376)]
load = [0] * 376
for it in items:
    if it["e"] == it["d"] and not it["preds"]: it["g"] = it["e"]; load[it["e"]] += it["cost"]; fillR[it["e"]].append(it)
CAP = 2
for g in range(376):
    while True:
        ready = [it for it in items if it["g"] is None and it["e"] <= g and all(items[p]["g"] is not None and items[p]["g"] + dist <= g for p, dist in it["preds"])]
        if not ready: break
        it = min(ready, key=lambda z: z["d"])
        if load[g] + 1 > CAP and it["d"] > g: break
        it["g"] = g; load[g] += it["cost"]; fillR[g].append(it)
assert all(it["g"] is not None for it in items)
late = [(it["t"][0], it["g"], it["d"]) for it in items if it["g"] > it["d"] + 0.6]
assert not late, late
sys.stderr.write("R overflow slots: %d, loads: %s\n" % (sum(max(0, l - 2) for l in load), "".join(str(min(l, 9)) for l in load)))
hist = [("P", 9)]*4 + [("X0", 0)]*5 + [("Wa0", q) for q in range(8)] + [("ST", q) for q in range(6)] + [("Wb0", q) for q in range(8)] + [("X1", 0)]*5 + [("G", 0)]*(3 + NWARM)
ldsq = []
def vw(marker):
    k = len(hist) - 1 - hist[::-1].index(marker); return len(hist) - 1 - k
outR = [[] for _ in range(376)]
bstart = {}
for g in range(376):
    if g in G0:
        k = G0.index(g)
        m = {1: ("X1", 0), 4: ("X2", 4)}.get(k)
        bstart[k] = f"s_waitcnt vmcnt({vw(m)}) lgkmcnt(0)" if m else "s_waitcnt lgkmcnt(0)"
    for it in fillR[g]:
        if it["lw"] is not None:
            srcs = [items[z] for z in (it["lw"] if isinstance(it["lw"], list) else [it["lw"]])]
            ns = [ldsq[::-1].index(id(src)) for src in srcs if src["g"] >= max(z for z in G0 if z <= g)]
            if ns: outR[g].append(f"s_waitcnt lgkmcnt({min(min(ns), 15)})")
        if it["vw"] is not None: outR[g].append(f"s_waitcnt vmcnt({vw(it['vw'])})")
        for x in it["t"]:
            outR[g].append(x)
            if x.startswith("ds_"): ldsq.append(id(it))
        if it["tag"]: hist.append(it["tag"])
if PROF == 2:
    for k in range(14): outR[27*k + 1].append(f"s_memtime s[{74+2*k}:{75+2*k}]")
A(f"s_mov_b32 {sWo}, 49152\ns_mov_b32 {sCnt}, 7")
if PROF: A("s_memtime s[70:71]\ns_mov_b32 s72, 0\nv_mov_b32 v255, 0")
def bfR(p, q):
    if p == "c": return bf(p, q)
    r = {"a": RA_, "b": RB_}[p] + 4*q; return f"v[{r}:{r+3}]"
for k in range(6):
    A(bstart[k])
    if k == 0: stamp()
    if PR[k] == "b": A("s_barrier")
    product(PR[k], k // 3, outR[G0[k]:G0[k+1]] + [[] for _ in range(64 - G0[k+1] + G0[k])], NQ[k], bfR, k < 3)
stamp()
if PROF == 2:
    A("s_waitcnt lgkmcnt(0)")
    for k in range(14): A(f"v_writelane_b32 v255, s{74+2*k}, {k}")
    A("s_mov_b32 s72, 14")
A("L_loop:")
for k in range(6):
    A(res[(k, -1)][0])
    if PR[k] == "b": A("s_barrier")
    product(PR[k], k // 3, [list(res.get((k, i), [])) for i in range(64)], NQ[k])
A("s_cbranch_scc1 L_loop")
stamp()
a_, b_, c_ = ACC["a"], ACC["b"], ACC["c"]
def pr(r): return f"v[{r}:{r+1}]"
for i in range(4): A(f"v_mov_b32_dpp v{T0+i}, v{a_+i} row_shl:1 row_mask:0xf bank_mask:0xf bound_ctrl:0")
A(f"""v_and_b32 v13, 15, {vLane}
s_cmp_eq_u32 {sM}, 31
s_cselect_b32 s50, 5, 16
s_cselect_b32 s51, 5, 15
v_cmp_gt_u32 s[52:53], s50, v13
v_cmp_gt_u32 s[54:55], s51, v13
s_nop 3""")
for j in range(8):
    for h in range(2):
        A(f"v_pk_add_f32 {pr(c_+4*j+2*h)}, {pr(c_+4*j+2*h)}, {pr(b_+4*j+2*h)} neg_lo:[0,1] neg_hi:[0,1]")
    for h in range(2):
        A(f"v_pk_add_f32 {pr(b_+4*j+2*h)}, {pr(b_+4*j+2*h)}, {pr(a_+4*j+2*h)}")
    for h in range(2):
        nx = a_+4*(j+1)+2*h if j < 7 else T0+2*h
        A(f"v_pk_add_f32 {pr(c_+4*j+2*h)}, {pr(c_+4*j+2*h)}, {pr(nx)} neg_lo:[0,1] neg_hi:[0,1]")
A('s_waitcnt vmcnt(0)')
for i in range(4): A(f"v_cndmask_b32 v{T0+4+i}, 0, v{c_+28+i}, s[54:55]")
SUM, SQ = 112, 116
vals = [b_+4*j for j in range(8)] + [c_+4*j for j in range(7)] + [T0+4]
for k, r in enumerate(vals):
    for h in range(2):
        if k == 1: A(f"v_pk_add_f32 {pr(SUM+2*h)}, {pr(vals[0]+2*h)}, {pr(r+2*h)}")
        elif k > 1: A(f"v_pk_add_f32 {pr(SUM+2*h)}, {pr(SUM+2*h)}, {pr(r+2*h)}")
        if k == 0: A(f"v_pk_mul_f32 {pr(SQ+2*h)}, {pr(r+2*h)}, {pr(r+2*h)}")
        else: A(f"v_pk_fma_f32 {pr(SQ+2*h)}, {pr(r+2*h)}, {pr(r+2*h)}, {pr(SQ+2*h)}")
for i in range(8): A(f"v_cndmask_b32 v{SUM+i}, 0, v{SUM+i}, s[52:53]")
def rowreduce(base):
    for sh in (8, 4, 2, 1):
        for i in range(8): A(f"v_add_f32_dpp v{base+i}, v{base+i}, v{base+i} row_ror:{sh} row_mask:0xf bank_mask:0xf")
rowreduce(SUM)
A(f"""v_cmp_eq_u32 vcc, 1, v13
v_cmp_eq_u32 s[50:51], 2, v13
v_cmp_eq_u32 s[56:57], 3, v13
v_cmp_gt_u32 s[58:59], 4, v13
v_cndmask_b32 v120, v{SUM}, v{SUM+1}, vcc
v_cndmask_b32 v122, v{SQ}, v{SQ+1}, vcc
v_cndmask_b32 v120, v120, v{SUM+2}, s[50:51]
v_cndmask_b32 v122, v122, v{SQ+2}, s[50:51]
v_cndmask_b32 v120, v120, v{SUM+3}, s[56:57]
v_cndmask_b32 v122, v122, v{SQ+3}, s[56:57]
v_mov_b32 v121, {sNA}
v_mov_b32 v123, {sNB}
s_lshl_b32 s50, {sB}, 4
s_add_u32 s50, s50, {sNu}
s_lshl_b32 s50, s50, 13
s_add_u32 s50, s50, {STAT_OFF}
s_lshl_b32 s51, {sM}, 8
s_add_u32 s51, s51, s50
v_lshrrev_b32 v14, 4, {vLane}
v_lshlrev_b32 v14, 6, v14
v_and_b32 v15, 3, v13
v_lshl_add_u32 v14, v15, 4, v14
v_lshrrev_b32 v15, 2, v13
v_lshl_add_u32 v14, v15, 8, v14
s_mov_b64 exec, s[58:59]
buffer_store_dwordx4 v[120:123], v14, s[32:35], s51 offen sc1
s_mov_b64 exec, -1""")
stamp()
for k in range(3): A(f"v_lshlrev_b32 v{vG+k}, 16, v{vG+k}")
A(f"""s_mul_i32 s51, {sB}, {7985*512}
s_add_u32 s8, s26, s51
s_addc_u32 s9, s27, 0
s_mov_b32 s10, {7985*512}
s_mul_i32 s51, {sM}, {255*512}
s_lshl_b32 s56, {sNu}, 5
s_add_u32 s51, s51, s56
v_lshrrev_b32 v15, 4, {vLane}
v_lshlrev_b32 v15, 3, v15
v_lshl_add_u32 v15, v13, 13, v15
v_add_u32 v15, s51, v15
v_add_u32 v136, 4096, v15
v_mov_b32 v137, 0x40000000
v_cndmask_b32 v137, v137, v136, s[54:55]
s_add_u32 s51, s50, 4096
s_mov_b32 {sCnt}, 30000""")
OPAD = 2064
A(f"""v_mul_u32_u24 v188, {OPAD}, v13
v_lshrrev_b32 v15, 4, {vLane}
v_lshl_add_u32 v188, v15, 3, v188
s_lshl_b32 s56, {sW}, 5
s_add_u32 s56, s56, {RB0}
v_add_u32 v188, s56, v188
v_lshrrev_b32 v195, 5, {vLane}
s_lshl_b32 s56, {sW}, 2
v_add_u32 v195, s56, v195
v_and_b32 v196, 31, {vLane}
v_mul_u32_u24 v189, {OPAD}, v195
v_lshl_add_u32 v189, v196, 4, v189
v_add_u32 v189, {RB0}, v189
v_bfe_u32 v196, {vLane}, 3, 2
v_lshlrev_b32 v195, 13, v195
v_lshl_add_u32 v195, v196, 9, v195
v_and_b32 v196, 7, {vLane}
v_lshl_add_u32 v195, v196, 4, v195
s_mul_i32 s56, {sM}, {255*512}
s_lshl_b32 s57, {sN}, 7
s_add_u32 s56, s56, s57
v_add_u32 v190, s56, v195
v_add_u32 v191, 4096, v190
v_add_u32 v192, 16384, v190
v_add_u32 v193, 20480, v190
v_cmp_gt_u32 vcc, 248, v0
v_mov_b32 v194, 0x40000000
s_nop 0
v_cndmask_b32 v194, v194, v193, vcc""" if int(OPT.get("ost", 1)) else "")
A("L_poll2:")
P = 152
if int(OPT.get("psleep", 0)): A(f"s_sleep {OPT['psleep']}")
for k in range(8):
    A(f"buffer_load_dwordx4 v[{P+4*k}:{P+4*k+3}], v14, s[32:35], {'s50' if k < 4 else 's51'} offen offset:{(k & 3)*1024} sc1")
A(f"s_sub_u32 {sCnt}, {sCnt}, 1\ns_cbranch_scc1 L_poll2_done")
for k in range(8):
    A(f"s_waitcnt vmcnt({7-k})")
    A(f"v_xor_b32 v{P+4*k+1}, {sNA}, v{P+4*k+1}\nv_xor_b32 v{P+4*k+3}, {sNB}, v{P+4*k+3}")
    if k == 0: A(f"v_or_b32 v138, v{P+1}, v{P+3}")
    else: A(f"v_or3_b32 v138, v138, v{P+4*k+1}, v{P+4*k+3}\nv_add_f32 v{P}, v{P}, v{P+4*k}\nv_add_f32 v{P+2}, v{P+2}, v{P+4*k+2}")
A("""v_cmp_ne_u32 vcc, 0, v138
s_cbranch_vccnz L_poll2
L_poll2_done:""")
stamp()
import struct
def f2h(x): return hex(struct.unpack("<I", struct.pack("<f", x))[0])
DP = "row_mask:0xf bank_mask:0xf"
A(f"""s_mov_b32 s50, {f2h(1.0/7985)}
s_mov_b32 s51, {f2h(1e-5)}
v_add_f32_dpp v{P}, v{P}, v{P} row_ror:4 {DP}
v_add_f32_dpp v{P+2}, v{P+2}, v{P+2} row_ror:4 {DP}
s_nop 0
v_add_f32_dpp v{P}, v{P}, v{P} row_ror:8 {DP}
v_add_f32_dpp v{P+2}, v{P+2}, v{P+2} row_ror:8 {DP}
v_mul_f32 v{P}, s50, v{P}
v_mul_f32 v{P+2}, s50, v{P+2}
v_fma_f32 v{P+2}, -v{P}, v{P}, v{P+2}
v_max_f32 v{P+2}, 0, v{P+2}
v_add_f32 v{P+2}, s51, v{P+2}
v_rsq_f32 v{P+2}, v{P+2}
v_add_f32 v{P}, v{P}, v{vG+2}
v_sub_f32 v{P}, v{vG+2}, v{P}
v_mul_f32 v{P+2}, v{P+2}, v{vG}
v_fma_f32 v{P}, v{P}, v{P+2}, v{vG+1}""")
A(f"""s_lshl_b32 s50, {sN}, 1
s_or_b32 s51, {sM}, {sB}
s_cmp_eq_u32 s51, 0
s_cbranch_scc0 L_noep
v_mov_b32 v138, {sNA}
s_lshl_b32 s50, {sN}, 8
s_add_u32 s50, s50, {EPOCH_OFF}
v_mov_b32 v139, s50
v_cmp_eq_u32 vcc, 0, v0
s_and_saveexec_b64 s[50:51], vcc
buffer_store_dword v138, v139, s[32:35], 0 offen sc1
s_mov_b64 exec, s[50:51]
L_noep:""")
for i in range(4):
    A(f"v_mov_b32_dpp v{SQ+i}, v{P+2} quad_perm:[{i},{i},{i},{i}] {DP}\nv_mov_b32_dpp v{SUM+i}, v{P} quad_perm:[{i},{i},{i},{i}] {DP}")
A(f"""v_mov_b32 v140, {f2h(-2.302208198)}
v_mov_b32 v141, {f2h(-2.302208198)}
v_mov_b32 v142, {f2h(-0.1029432397)}
v_mov_b32 v143, {f2h(-0.1029432397)}""")
OST = int(OPT.get("ost", 1)); OM = OPT.get('omode','').replace('_',' ')
def gelu(j):
    L = []
    regs = [b_+4*j, b_+4*j+2, c_+4*j, c_+4*j+2]
    tp = [152 + 2*k for k in range(4)]
    for k, r in enumerate(regs): L.append(f"v_pk_fma_f32 {pr(r)}, {pr(r)}, {pr(SQ+2*(k&1))}, {pr(SUM+2*(k&1))}")
    for r, t in zip(regs, tp): L.append(f"v_pk_mul_f32 {pr(t)}, {pr(r)}, {pr(r)}")
    for r, t in zip(regs, tp): L.append(f"v_pk_fma_f32 {pr(t)}, {pr(t)}, v[142:143], v[140:141]")
    for r, t in zip(regs, tp): L.append(f"v_pk_mul_f32 {pr(t)}, {pr(t)}, {pr(r)}")
    for t in tp: L += [f"v_exp_f32 v{t}, v{t}", f"v_exp_f32 v{t+1}, v{t+1}"]
    for t in tp: L.append(f"v_pk_add_f32 {pr(t)}, {pr(t)}, 1.0 op_sel_hi:[1,0]")
    for t in tp: L += [f"v_rcp_f32 v{t}, v{t}", f"v_rcp_f32 v{t+1}, v{t+1}"]
    for r, t in zip(regs, tp): L.append(f"v_pk_mul_f32 {pr(t)}, {pr(t)}, {pr(r)}")
    d = 160 + 4*(j & 1)
    for k, t in enumerate(tp): L.append(f"v_cvt_pk_bf16_f32 v{d+k}, v{t}, v{t+1}")
    return L, d
def ofetch(s_):
    d = 168 + 8*(s_ & 1)
    rd = ["s_waitcnt lgkmcnt(0)", "s_barrier"] + [f"ds_read_b128 v[{d+4*i}:{d+4*i+3}], v189 offset:{i*2*OPAD + s_*512}" for i in range(2)]
    st = [f"s_waitcnt lgkmcnt({1-i})\nbuffer_store_dwordx4 v[{d+4*i}:{d+4*i+3}], v{194 if (i, s_) == (1, 3) else 190 + 2*i + (s_ >> 1)}, s[8:11], 0 offen offset:{(s_ & 1)*2048} {OM}" for i in range(2)]
    return rd, st
for j in range(8):
    L, d = gelu(j)
    if OST:
        if j >= 2 and j % 2 == 0:
            rd, st = ofetch(j // 2 - 1)
            L = L[:8] + rd + L[8:24] + st[:1] + L[24:36] + st[1:] + L[36:]
        for par in range(2): L.append(f"ds_write_b64 v188, v[{d+2*par}:{d+2*par+1}] offset:{(2*j+par)*128}")
        if j == 7:
            rd, st = ofetch(3); L += rd + st
    else:
        for par in range(2):
            row = 2*j + par
            va = "v15" if row < 8 else ("v136" if row < 15 else "v137")
            L.append(f"buffer_store_dwordx2 v[{d+2*par}:{d+2*par+1}], {va}, s[8:11], 0 offen offset:{(row & 7)*512} {OM}")
    for x in L: A(x)
if STAMP:
    stamp()
    A("s_waitcnt vmcnt(0)")
    stamp()
    if STAMP == 2:
        A("s_cmp_eq_u32 s2, 100\ns_cbranch_scc0 L_end\ns_mov_b32 s8, s28\ns_mov_b32 s9, s29\ns_mov_b32 s10, 256\nv_mov_b32 v13, 0\nv_cmp_eq_u32 vcc, 0, v0\ns_and_saveexec_b64 s[50:51], vcc")
        for k in range(1, nstamp[0]):
            A(f"s_sub_u32 s50, s{74+2*k}, s74\nv_mov_b32 v14, s50\nbuffer_store_dword v14, v13, s[8:11], 0 offen offset:{4*k}\ns_nop 1")
        A("s_waitcnt vmcnt(0)\ns_endpgm")
    A(f"s_add_u32 s8, s30, {200<<20}\ns_addc_u32 s9, s31, 0\ns_mov_b32 s10, 65536\ns_lshl_b32 s50, s2, 7\nv_mov_b32 v13, s50\nv_cmp_eq_u32 vcc, 0, v0\ns_and_saveexec_b64 s[50:51], vcc")
    for k in range(nstamp[0]): A(f"v_mov_b32 v14, s{74+2*k}\nv_mov_b32 v15, s{75+2*k}\nbuffer_store_dwordx2 v[14:15], v13, s[8:11], 0 offen offset:{8*k}\ns_nop 1")
if PROF:
    A(f"s_memtime s[70:71]\ns_mov_b32 m0, s72\ns_waitcnt lgkmcnt(0)\nv_writelane_b32 v255, s70, m0\ns_add_u32 s8, s30, {200<<20}\ns_addc_u32 s9, s31, 0\ns_mov_b32 s10, 65536\ns_lshl_b32 s50, s2, 8\nv_lshl_add_u32 v13, v0, 2, s50\nv_cmp_gt_u32 vcc, 64, v0\ns_and_saveexec_b64 s[50:51], vcc\nbuffer_store_dword v255, v13, s[8:11], 0 offen")
A("L_end:\ns_endpgm")
A(f"""L_spin:
s_mov_b32 s52, 30000
L_spin1:
buffer_load_dwordx2 v[150:151], v149, s[32:35], 0 offen offset:{FLAG_OFF} sc1
s_sub_u32 s52, s52, 1
s_cbranch_scc1 L_spin_ret
s_waitcnt vmcnt(0)
v_cmp_eq_u32 vcc, {sNA}, v150
v_cmp_eq_u32 s[50:51], {sNB}, v151
s_and_b64 vcc, vcc, s[50:51]
s_cmp_eq_u64 vcc, -1
s_cbranch_scc0 L_spin1
s_branch L_spin_ret
L_codeend:""")
A(f""".section .rodata,"a"
.p2align 6
.amdhsa_kernel {KN}
.amdhsa_next_free_vgpr 512
.amdhsa_next_free_sgpr 102
.amdhsa_accum_offset 256
.amdhsa_group_segment_fixed_size 0
.amdhsa_kernarg_size 64
.amdhsa_user_sgpr_count 2
.amdhsa_user_sgpr_kernarg_segment_ptr 1
.amdhsa_system_sgpr_workgroup_id_x 1
.end_amdhsa_kernel""")
pend = 0
for l in o:
    l = l.strip()
    if re.match(r"s_\w+ m0,", l) and not PROF:
        assert pend == 0, "m0 collision"; pend = 1
    if l.startswith("buffer_load") and l.endswith("lds"):
        assert pend == 1 or PROF, "m0 missing"; pend = 0
print("\n".join(o))
```
